```python
import torch

def _softmax(x, axis=-1):
    return torch.softmax(x, dim=axis)
def _gelu(x):
    return torch.nn.functional.gelu(x, approximate="tanh")
def _silu(x):
    return torch.nn.functional.silu(x)
def _sigmoid(x):
    return torch.sigmoid(x)
def _layernorm(x, axis=-1, eps=1e-5):
    m = x.mean(dim=axis, keepdim=True)
    v = x.var(dim=axis, keepdim=True, unbiased=False)
    return (x - m) / torch.sqrt(v + eps)
def _scatter_add(tgt, idx, src, axis=0):
    return tgt.clone().index_add_(axis, idx, src)
def _segment_sum(src, seg, n):
    out = torch.zeros((n,) + src.shape[1:], dtype=src.dtype)
    return out.index_add_(0, seg, src)
def _pad(x, pw):
    flat = tuple(v for pair in reversed(pw) for v in pair)
    return torch.nn.functional.pad(x, flat)

kernel_name = 'standalone__low_rank_proj_linformer__sampling'

def setup_inputs():

    _w = (lambda a: (lambda t: t.to(torch.bfloat16) if t.is_floating_point() else t)(torch.as_tensor(a)))
    B, H, Sq, Skv, Dh, R = 8, 32, 8, 2048, 192, 16
    return {
        "q": _w((lambda *s: torch.randn(*s, dtype=torch.bfloat16) * 0.8)(B, H, Sq, Dh)),
        "k": _w((lambda *s: torch.randn(*s, dtype=torch.bfloat16) * 0.8)(B, H, Skv, Dh)),
        "v": _w((lambda *s: torch.randn(*s, dtype=torch.bfloat16) * 0.05)(B, H, Skv, Dh)),
        "e_proj": _w((lambda *s: torch.randn(*s, dtype=torch.bfloat16) * 0.8)(R, Skv) * (Skv ** -0.5)),
        "f_proj": _w((lambda *s: torch.randn(*s, dtype=torch.bfloat16) * 0.05)(R, Skv) * (Skv ** -0.5)),
    }

def reference(q, k, v, e_proj, f_proj):
    B, H, Sq, Dh = q.shape
    kp = torch.einsum("rn,bhnd->bhrd", e_proj, k)
    vp = torch.einsum("rn,bhnd->bhrd", f_proj, v)
    scores = torch.einsum("bhqd,bhrd->bhqr", q, kp) * (Dh ** -0.5)
    p = _softmax(scores, axis=-1)
    o = torch.einsum("bhqr,bhrd->bhqd", p, vp)
    return o
```

```python
import sys, argparse

NAME = "standalone__low_rank_proj_linformer__sampling"
HEADER = """; Kernarg layout for this problem (64 bytes, ptrs only, base s[0:1]):
"""

def schedule(W, R):
    def grp(x):
        return 4 * (x // 64) + (x % 32) // 8
    def idx(x):
        return 16 * grp(x)
    done = [max(grp(x) for x in range(12 * b, 12 * b + 12)) for b in range(128)]
    slack = 10**9
    for x in range(1536 - R):
        free = 16 * (done[x // 12] + 1) + 15 + W
        slack = min(slack, idx(x + R) - free)
    assert slack >= 0, slack
    seq = sorted(range(16), key=lambda b: (done[b], b))
    first = [int(i == 0 or done[seq[i]] != done[seq[i - 1]]) for i in range(16)]
    assert sorted(set(done[:16])) == list(range(1, 12))
    return seq, first, slack

def gen(W=19, R=120, pol="nt", epol="", spol="", stamp=False, Wend=32, nend=4, split=1, elate=1, padl=0, padc=0, warm=0):
    seq, first, slack = schedule(max(W, Wend), R)
    assert seq[-3:] == [12, 13, 15]
    SEQ = sum(b << (4 * i) for i, b in enumerate(seq))
    FL = sum(f << i for i, f in enumerate(first)) | (1 << 16)
    FL_LAST = FL | ((7 << 13) if split else 0)
    RB = R * 1024
    ES = 16 * 1040
    EOFF = RB
    SOFF = RB + 2 * ES
    LDS = SOFF + 3072
    assert LDS <= 163840
    pol = (" " + pol) if pol else ""
    epol = (" " + epol) if epol else ""
    spol = (" " + spol) if spol else ""
    L = []; e = L.append
    sTS = 64
    def ts(k):
        if stamp:
            e(f"    s_memrealtime s[{sTS+2*k}:{sTS+2*k+1}]")
    sD, sE, sQ, sO = 16, 20, 24, 28
    sW = 3
    e(HEADER.rstrip())
    e(f"; @launch grid=(256,1,1) block=(256,1,1) lds={LDS}")
    e('.amdgcn_target "amdgcn-amd-amdhsa--gfx950"')
    e(".text")
    e(f".globl {NAME}_kernel")
    e(".p2align 8")
    e(f".type {NAME}_kernel,@function")
    e(f"{NAME}_kernel:")
    e("    s_load_dwordx8 s[4:11], s[0:1], 0        ; q k v e")
    e("    s_load_dwordx4 s[12:15], s[0:1], 32      ; f out")
    if stamp:
        e(f"    s_load_dwordx2 s[60:61], s[0:1], 56")
        ts(0)
    e("    s_cmp_ge_u32 s2, 256")
    e("    s_cbranch_scc1 L_end")
    e(f"    v_readfirstlane_b32 s{sW}, v0")
    e("    v_lshrrev_b32 v2, 4, v0")
    e("    v_lshlrev_b32 v1, 4, v0")
    e("    v_lshlrev_b32 v2, 5, v2")
    e("    s_mul_i32 s32, s2, 786432")
    e(f"    s_cmp_lg_u32 s{sW}, 0")
    e("    s_cbranch_scc1 L_cons")
    sQi, sT = 35, 36
    sU = [40, 41, 42, 43]; mU = [44, 45, 46, 47]
    DU = (0, 4096, 32768, 36864)
    e("    v_xor_b32 v1, v1, v2")
    e(f"    s_mov_b32 s{sD+2}, 786432")
    e(f"    s_mov_b32 s{sD+3}, 0x20000")
    e(f"    s_mov_b32 s{sQi}, 0")
    for u in range(4):
        e(f"    s_mov_b32 s{sU[u]}, {DU[u]}")
        e(f"    s_mov_b32 s{mU[u]}, s{sU[u]}")
    e("    s_waitcnt lgkmcnt(0)")
    ts(1)
    e(f"    s_add_u32 s{sD}, s6, s32")
    e(f"    s_addc_u32 s{sD+1}, s7, 0")
    def load(u, i, Wx, bar=None):
        e(f"    s_mov_b32 m0, s{mU[u]}")
        e(f"    s_waitcnt vmcnt({Wx-1})")
        if bar == "cond":
            e(f"    s_cbranch_scc1 L_nobar")
            e("    s_barrier")
            e(f"L_nobar:")
        elif bar:
            e("    s_barrier")
        e(f"    buffer_load_dwordx4 v1, s[{sD}:{sD+3}], s{sU[u]} offen offset:{i*1024}{pol} lds")
    def body(Wx, cond):
        for pos in range(16):
            load(pos & 3, pos >> 2, Wx, (("cond" if cond else True) if pos == max(Wx - 17, 0) else None))
    def advance():
        e(f"    s_add_u32 s{sQi}, s{sQi}, 1")
        e(f"    s_and_b32 s{sT}, s{sQi}, 3")
        e(f"    s_cselect_b32 s{sT}, 8, 40")
        e(f"    s_lshl_b32 s{sT}, s{sT}, 10")
        for u in range(4):
            e(f"    s_add_u32 s{sU[u]}, s{sU[u]}, s{sT}")
            e(f"    s_add_u32 s{mU[u]}, s{mU[u]}, s{sT}")
            e(f"    s_sub_u32 s37, s{mU[u]}, {RB}")
            e(f"    s_cselect_b32 s{mU[u]}, s{mU[u]}, s37")
    for _ in range(padl):
        e("    s_nop 0")
    nend = max(nend, 1)
    e("L_lgrp:")
    e(f"    s_cmp_lt_u32 s{sQi}, 2")
    body(W, True)
    advance()
    e(f"    s_cmp_lg_u32 s{sQi}, 48")
    e(f"    s_cbranch_scc1 L_lnosw")
    e(f"    s_add_u32 s{sD}, s8, s32")
    e(f"    s_addc_u32 s{sD+1}, s9, 0")
    for u in range(4):
        e(f"    s_mov_b32 s{sU[u]}, {DU[u]}")
    e("L_lnosw:")
    e(f"    s_cmp_lt_u32 s{sQi}, {96-nend}")
    e(f"    s_cbranch_scc1 L_lgrp")
    if nend > 1:
        e("L_lend:")
        body(Wend, False)
        advance()
        e(f"    s_cmp_lt_u32 s{sQi}, 95")
        e(f"    s_cbranch_scc1 L_lend")
    if split:
        order = [(0, i) for i in range(4)] + [(1, i) for i in range(4)] + [(u, i) for i in range(4) for u in (2, 3)]
        for pos, (u, i) in enumerate(order):
            load(u, i, Wend, True if pos == max(Wend - 17, 0) else None)
        for n in (16, 12, 8):
            e(f"    s_waitcnt vmcnt({n})")
            e("    s_barrier")
    else:
        body(Wend, False)
        e("    s_waitcnt vmcnt(16)")
        e("    s_barrier")
    e("    s_waitcnt vmcnt(0)")
    ts(5)
    e("    s_barrier")
    if stamp:
        for k in (2, 3, 4):
            e(f"    s_mov_b32 s{sTS+2*k}, s{sTS}")
        e("    s_branch L_fin")
    else:
        e("    s_endpgm")
    sC, sP, sP0, sEo, sEn, sFl, sSeq, sB, sT2 = 33, 34, 37, 38, 39, 40, 42, 45, 46
    sSC, sL2E, sMSK, sER, sEs = 47, 48, 49, 51, 52
    vA = [4, 5, 6, 7]; vB = [8, 9, 10, 11]; vE0, vE, vL16, vQo, vSR = 12, 13, 14, 15, 3
    vP, vQD, ACC, TT, EE = 16, 20, 28, 44, 60
    NV = 64
    e("L_cons:")
    e(f"    s_lshr_b32 s{sC}, s{sW}, 6")
    e(f"    s_sub_u32 s{sC}, s{sC}, 1")
    e("    v_and_b32 v0, 63, v0")
    e(f"    v_lshlrev_b32 v{vL16}, 4, v0")
    def eload0():
        e(f"    s_mov_b32 s{sE+2}, 65536")
        e(f"    s_mov_b32 s{sE+3}, 0x20000")
        e(f"    s_mul_i32 s{sT}, s{sC}, 1040")
        e(f"    s_add_u32 s{sT}, s{sT}, {EOFF}")
        e(f"    s_lshl_b32 s{sT2}, s{sC}, 12")
        e("    s_waitcnt lgkmcnt(0)")
        ts(1)
        e(f"    s_mov_b32 s{sE}, s10")
        e(f"    s_mov_b32 s{sE+1}, s11")
        for k in range(6):
            if k == 5:
                e(f"    s_cmp_lg_u32 s{sC}, 0")
                e(f"    s_cbranch_scc1 L_e0done")
            e(f"    s_add_u32 m0, s{sT}, {3*k*1040}")
            e(f"    s_add_u32 s{sB}, s{sT2}, {3*k*4096}")
            e(f"    buffer_load_dwordx4 v{vL16}, s[{sE}:{sE+3}], s{sB} offen{epol} lds")
        e("L_e0done:")
        e("    s_mul_i32 s32, s2, 3072")
        e(f"    s_add_u32 s{sQ}, s4, s32")
        e(f"    s_addc_u32 s{sQ+1}, s5, 0")
        e(f"    s_mov_b32 s{sQ+2}, 3072")
        e(f"    s_mov_b32 s{sQ+3}, 0x20000")
        e(f"    s_add_u32 s{sO}, s14, s32")
        e(f"    s_addc_u32 s{sO+1}, s15, 0")
        e(f"    s_mov_b32 s{sO+2}, {3072 if warm else 0}")
        e(f"    s_mov_b32 s{sO+3}, 0x20000")
    def qload():
        for t in range(4):
            e(f"    buffer_load_dwordx2 v[{vQD+2*t}:{vQD+2*t+1}], v{vQo}, s[{sQ}:{sQ+3}], 0 offen offset:{32*t}")
    if not elate:
        eload0()
    e("    v_and_b32 v1, 15, v0                      ; j / r / q")
    e("    v_lshrrev_b32 v2, 4, v0                   ; g")
    e(f"    v_mul_u32_u24 v{vQo}, 0x180, v1")
    e(f"    s_lshl_b32 s{sT}, s{sC}, 7")
    e(f"    v_lshl_add_u32 v{vQo}, v2, 3, v{vQo}")
    e(f"    v_add_u32 v{vQo}, s{sT}, v{vQo}")
    if not elate:
        qload()
    e(f"    v_mul_u32_u24 v{vE0}, 0x410, v1")
    e(f"    v_lshl_add_u32 v{vE0}, v2, 3, v{vE0}")
    e(f"    v_lshrrev_b32 v{vA[1]}, 2, v0")
    e(f"    v_mul_u32_u24 v{vA[1]}, 3, v{vA[1]}")
    e(f"    v_add_u32 v{vA[1]}, s{sC}, v{vA[1]}          ; L")
    e(f"    v_bfe_u32 v{vA[2]}, v{vA[1]}, 1, 2")
    e(f"    v_lshlrev_b32 v{vA[2]}, 5, v{vA[2]}")
    e(f"    v_lshl_add_u32 v{vA[2]}, v{vA[1]}, 7, v{vA[2]}")
    e(f"    v_and_b32 v{vA[3]}, 3, v0")
    e(f"    v_lshl_add_u32 v{vA[0]}, v{vA[3]}, 3, v{vA[2]}")
    for t in range(1, 4):
        e(f"    v_xor_b32 v{vA[t]}, {32*t}, v{vA[0]}")
    e(f"    v_add_u32 v{vSR}, {SOFF}, v{vL16}")
    e(f"    v_lshlrev_b32 v2, 2, v2")
    e(f"    v_sub_u32 v2, v1, v2                      ; col - 4g")
    e(f"    v_mov_b32 v{TT}, 0x3f80")
    e(f"    v_mov_b32 v{TT+1}, 0x3f800000")
    e(f"    v_mov_b32 v{vP}, 0")
    e(f"    v_mov_b32 v{vP+1}, 0")
    for k in range(4):
        e(f"    v_cmp_eq_u32 vcc, {k}, v2")
        e(f"    s_nop 1")
        e(f"    v_cndmask_b32 v{vP+(k>>1)}, v{vP+(k>>1)}, v{TT+(k&1)}, vcc")
    e(f"    s_mov_b32 s{sSC}, 0x3d93cd3a               ; 192^-0.5")
    e(f"    s_mov_b32 s{sL2E}, 0x3fb8aa3b              ; log2(e)")
    e(f"    s_mov_b32 s{sMSK}, 0xffff0000")
    e(f"    s_mov_b32 s{sP}, 0")
    e(f"    s_mov_b32 s{sP0}, 0")
    e(f"    s_mov_b32 s{sEo}, {EOFF}")
    e(f"    s_mov_b32 s{sEn}, {EOFF+ES}")
    for r in range(16):
        e(f"    v_mov_b32 v{ACC+r}, 0")
    if elate:
        eload0()
        qload()
    for _ in range(padc):
        e("    s_nop 0")
    e("L_period:")
    e(f"    s_mov_b32 s{sSeq}, {SEQ & 0xffffffff:#x}")
    e(f"    s_mov_b32 s{sSeq+1}, {SEQ >> 32:#x}")
    e(f"    s_mov_b32 s{sFl}, {FL:#x}")
    e(f"    s_mov_b32 s{sER}, s{sC}")
    e(f"    s_add_u32 s{sEs}, s{sP}, 1")
    e(f"    s_and_b32 s{sEs}, s{sEs}, 3")
    e(f"    s_cbranch_scc1 L_nosw")
    e(f"    s_mov_b32 s{sE}, s12")
    e(f"    s_mov_b32 s{sE+1}, s13")
    e("L_nosw:")
    e(f"    s_lshl_b32 s{sEs}, s{sEs}, 10")
    e(f"    s_cmp_eq_u32 s{sP}, 7")
    e(f"    s_cselect_b32 s{sER}, 16, s{sER}")
    e(f"    s_cselect_b32 s{sFl}, {FL_LAST:#x}, s{sFl}")
    e("    s_barrier")
    if stamp:
        e(f"    s_cmp_lg_u32 s{sP}, 0")
        e(f"    s_cbranch_scc1 L_nots2")
        ts(2)
        e("L_nots2:")
    e(f"    s_cmp_eq_u32 s{sP}, 4")
    e(f"    s_cbranch_scc1 L_softmax")
    e("L_q0done:")
    e("    s_waitcnt vmcnt(0)")
    e("L_block:")
    e(f"    s_and_b32 s{sB}, s{sSeq}, 15")
    e(f"    s_lshr_b64 s[{sSeq}:{sSeq+1}], s[{sSeq}:{sSeq+1}], 4")
    e(f"    s_lshl_b32 s{sT2}, s{sB}, 6")
    e(f"    s_add_u32 s{sT2}, s{sT2}, s{sEo}")
    e(f"    s_mul_i32 s{sB}, s{sB}, 12288")
    e(f"    v_add_u32 v{vE}, s{sT2}, v{vE0}")
    e(f"    s_add_u32 s{sB}, s{sB}, s{sP0}")
    for _ in range(2):
        e(f"    s_sub_u32 s{sT}, s{sB}, {RB}")
        e(f"    s_cselect_b32 s{sB}, s{sB}, s{sT}")
    for t in range(4):
        e(f"    v_add_u32 v{vB[t]}, s{sB}, v{vA[t]}")
    e(f"    s_bitcmp0_b32 s{sFl}, 0")
    e(f"    s_cbranch_scc1 L_nobarc")
    e("    s_barrier")
    e("L_nobarc:")
    e(f"    ds_read_b64 v[{EE}:{EE+1}], v{vE}")
    e(f"    ds_read_b64 v[{EE+2}:{EE+3}], v{vE} offset:32")
    for t in range(4):
        e(f"    ds_read_b64_tr_b16 v[{TT+4*t}:{TT+4*t+1}], v{vB[t]}")
        e(f"    ds_read_b64_tr_b16 v[{TT+4*t+2}:{TT+4*t+3}], v{vB[t]} offset:6144")
    e(f"    s_cmp_ge_u32 s{sER}, 16")
    e(f"    s_cbranch_scc1 L_noe")
    e(f"    s_mul_i32 s{sT}, s{sER}, 1040")
    e(f"    s_add_u32 m0, s{sT}, s{sEn}")
    e(f"    s_lshl_b32 s{sT}, s{sER}, 12")
    e(f"    s_add_u32 s{sT}, s{sT}, s{sEs}")
    e(f"    s_add_u32 s{sER}, s{sER}, 3")
    e(f"    buffer_load_dwordx4 v{vL16}, s[{sE}:{sE+3}], s{sT} offen{epol} lds")
    e("L_noe:")
    e(f"    s_lshr_b32 s{sFl}, s{sFl}, 1")
    e(f"    s_cmp_lg_u32 s{sFl}, 1")
    for t in range(4):
        e(f"    s_waitcnt lgkmcnt({6-2*t})")
        e(f"    v_mfma_f32_16x16x32_bf16 v[{ACC+4*t}:{ACC+4*t+3}], v[{EE}:{EE+3}], v[{TT+4*t}:{TT+4*t+3}], v[{ACC+4*t}:{ACC+4*t+3}]")
    e(f"    s_cbranch_scc1 L_block")
    e(f"    s_add_u32 s{sP}, s{sP}, 1")
    e(f"    s_and_b32 s{sT}, s{sP}, 3")
    e(f"    s_cbranch_scc1 L_nextp")
    if stamp:
        e(f"    s_cmp_lg_u32 s{sP}, 4")
        e(f"    s_cbranch_scc1 L_nots3")
        ts(3)
        e("L_nots3:")
    A0 = TT; D0 = ACC; R0 = TT + 8
    e("    s_nop 0")
    for k in range(8):
        e(f"    v_cvt_pk_bf16_f32 v{A0+k}, v{ACC+2*k}, v{ACC+2*k+1}")
    e(f"    s_cmp_eq_u32 s{sP}, 8")
    for t in range(4):
        e(f"    v_mfma_f32_16x16x16_bf16 v[{D0+4*t}:{D0+4*t+3}], v[{A0+2*t}:{A0+2*t+1}], v[{vP}:{vP+1}], 0")
    e("    s_nop 4")
    for t in range(4):
        e(f"    v_cvt_pk_bf16_f32 v{R0+2*t}, v{D0+4*t}, v{D0+4*t+1}")
        e(f"    v_cvt_pk_bf16_f32 v{R0+2*t+1}, v{D0+4*t+2}, v{D0+4*t+3}")
        e(f"    buffer_store_dwordx2 v[{R0+2*t}:{R0+2*t+1}], v{vQo}, s[{sO}:{sO+3}], 0 offen offset:{32*t}{spol}")
    e(f"    s_cbranch_scc1 L_fin")
    S0 = EE
    e(f"    v_mfma_f32_16x16x32_bf16 v[{S0}:{S0+3}], v[{R0}:{R0+3}], v[{vQD}:{vQD+3}], 0")
    e(f"    v_mfma_f32_16x16x32_bf16 v[{S0}:{S0+3}], v[{R0+4}:{R0+7}], v[{vQD+4}:{vQD+7}], v[{S0}:{S0+3}]")
    e(f"    s_lshl_b32 s{sT}, s{sC}, 10")
    e(f"    v_add_u32 v{vE}, s{sT}, v{vSR}")
    for r in range(16):
        e(f"    v_mov_b32 v{ACC+r}, 0")
    e(f"    ds_write_b128 v{vE}, v[{S0}:{S0+3}]")
    e(f"    s_mov_b32 s{sO+2}, 3072")
    e("    s_waitcnt lgkmcnt(0)")
    e("L_nextp:")
    e(f"    s_add_u32 s{sP0}, s{sP0}, {196608 - RB}")
    e(f"    s_sub_u32 s{sT}, s{sP0}, {RB}")
    e(f"    s_cselect_b32 s{sP0}, s{sP0}, s{sT}")
    e(f"    s_mov_b32 s{sT}, s{sEo}")
    e(f"    s_mov_b32 s{sEo}, s{sEn}")
    e(f"    s_mov_b32 s{sEn}, s{sT}")
    e(f"    s_branch L_period")
    e("L_softmax:")
    X = TT; Y = TT + 12
    for m in range(3):
        e(f"    ds_read_b128 v[{X+4*m}:{X+4*m+3}], v{vSR} offset:{m*1024}")
    for m in range(1, 3):
        e(f"    s_waitcnt lgkmcnt({2-m})")
        for k in range(4):
            e(f"    v_add_f32 v{X+k}, v{X+k}, v{X+4*m+k}")
    def round4():
        e(f"    v_cvt_pk_bf16_f32 v{Y}, v{X}, v{X+1}")
        e(f"    v_cvt_pk_bf16_f32 v{Y+1}, v{X+2}, v{X+3}")
        e(f"    v_lshlrev_b32 v{X}, 16, v{Y}")
        e(f"    v_and_b32 v{X+1}, s{sMSK}, v{Y}")
        e(f"    v_lshlrev_b32 v{X+2}, 16, v{Y+1}")
        e(f"    v_and_b32 v{X+3}, s{sMSK}, v{Y+1}")
    round4()
    for i in range(4):
        e(f"    v_mul_f32 v{X+i}, s{sSC}, v{X+i}")
    round4()
    def allreduce(op):
        for sw in ("v_permlane16_swap_b32", "v_permlane32_swap_b32"):
            e(f"    v_mov_b32 v{Y+1}, v{Y}")
            e(f"    s_nop 1")
            e(f"    {sw} v{Y}, v{Y+1}")
            e(f"    s_nop 1")
            e(f"    {op} v{Y}, v{Y}, v{Y+1}")
    e(f"    v_max3_f32 v{Y}, v{X}, v{X+1}, v{X+2}")
    e(f"    v_max_f32 v{Y}, v{Y}, v{X+3}")
    allreduce("v_max_f32")
    for i in range(4):
        e(f"    v_sub_f32 v{X+i}, v{X+i}, v{Y}")
    for i in range(4):
        e(f"    v_mul_f32 v{X+i}, s{sL2E}, v{X+i}")
    for i in range(4):
        e(f"    v_exp_f32 v{X+i}, v{X+i}")
    e("    s_nop 0")
    e(f"    v_add_f32 v{Y}, v{X}, v{X+1}")
    e(f"    v_add_f32 v{Y+2}, v{X+2}, v{X+3}")
    e(f"    v_add_f32 v{Y}, v{Y}, v{Y+2}")
    allreduce("v_add_f32")
    e(f"    v_rcp_f32 v{Y}, v{Y}")
    e("    s_nop 0")
    for i in range(4):
        e(f"    v_mul_f32 v{X+i}, v{X+i}, v{Y}")
    e(f"    v_cvt_pk_bf16_f32 v{vP}, v{X}, v{X+1}")
    e(f"    v_cvt_pk_bf16_f32 v{vP+1}, v{X+2}, v{X+3}")
    ts(4)
    e(f"    s_branch L_q0done")
    e("L_fin:")
    if stamp:
        e(f"    s_cmp_eq_u32 s{sW}, 0")
        e(f"    s_cbranch_scc1 L_fin2")
        e(f"    s_mov_b32 s{sTS+10}, s{sTS}")
        e("L_fin2:")
        e("    s_waitcnt vmcnt(0)")
        ts(6)
        e(f"    s_getreg_b32 s{sTS+14}, hwreg(HW_REG_XCC_ID)")
        e(f"    s_getreg_b32 s{sT}, hwreg(HW_REG_HW_ID)")
        e(f"    s_and_b32 s{sTS+14}, s{sTS+14}, 15")
        e(f"    s_lshl_b32 s{sT}, s{sT}, 4")
        e(f"    s_or_b32 s{sTS+14}, s{sTS+14}, s{sT}")
        e(f"    s_mov_b32 s62, 0x100000")
        e(f"    s_mov_b32 s63, 0x20000")
        e("    s_waitcnt lgkmcnt(0)")
        for k in range(8):
            e(f"    v_mov_b32 v{ACC+k}, s{sTS+2*k}")
        e(f"    s_lshl_b32 s{sT}, s2, 7")
        e(f"    s_lshr_b32 s{sW}, s{sW}, 1")
        e(f"    s_add_u32 s{sT}, s{sT}, s{sW}")
        e(f"    v_mov_b32 v2, s{sT}")
        e(f"    buffer_store_dwordx4 v[{ACC}:{ACC+3}], v2, s[60:63], 0 offen")
        e(f"    buffer_store_dwordx4 v[{ACC+4}:{ACC+7}], v2, s[60:63], 0 offen offset:16")
    e("L_end:")
    e("    s_endpgm")
    e('.section .rodata,"a"')
    e(".p2align 6")
    e(f".amdhsa_kernel {NAME}_kernel")
    e(f"  .amdhsa_next_free_vgpr {NV}")
    e(f"  .amdhsa_next_free_sgpr 80")
    e(f"  .amdhsa_accum_offset {(NV+3)//4*4}")
    e("  .amdhsa_group_segment_fixed_size 0")
    e("  .amdhsa_kernarg_size 64")
    e("  .amdhsa_user_sgpr_count 2")
    e("  .amdhsa_user_sgpr_kernarg_segment_ptr 1")
    e("  .amdhsa_system_sgpr_workgroup_id_x 1")
    e("  .amdhsa_float_denorm_mode_32 3")
    e(".end_amdhsa_kernel")
    return "\n".join(L) + "\n"

if __name__ == "__main__":
    ap = argparse.ArgumentParser()
    ap.add_argument("-o", default="-")
    for k, d in dict(W=19, R=120, Wend=32, nend=4, split=1, elate=1, padl=0, padc=0, warm=0).items():
        ap.add_argument("--" + k, type=int, default=d)
    for k, d in dict(pol="nt", epol="", spol="").items():
        ap.add_argument("--" + k, default=d)
    ap.add_argument("--stamp", action="store_true")
    a = vars(ap.parse_args()); o = a.pop("o")
    for k in ("pol", "epol", "spol"): a[k] = a[k].replace("+", " ")
    (sys.stdout if o == "-" else open(o, "w")).write(gen(**a))
```

```python
import sys, argparse

NAME = "standalone__low_rank_proj_linformer__sampling"
HEADER = """; Kernarg layout for this problem (64 bytes, ptrs only, base s[0:1]):
"""

def schedule(W, R):
    def grp(x):
        return 4 * (x // 64) + (x % 32) // 8
    def idx(x):
        return 16 * grp(x)
    done = [max(grp(x) for x in range(12 * b, 12 * b + 12)) for b in range(128)]
    slack = 10**9
    for x in range(1536 - R):
        free = 16 * (done[x // 12] + 1) + 15 + W
        slack = min(slack, idx(x + R) - free)
    assert slack >= 0, slack
    seq = sorted(range(16), key=lambda b: (done[b], b))
    first = [int(i == 0 or done[seq[i]] != done[seq[i - 1]]) for i in range(16)]
    assert sorted(set(done[:16])) == list(range(1, 12))
    return seq, first, slack

def gen(W=19, R=120, pol="nt", epol="", spol="", stamp=False, Wend=32, nend=4, split=1, elate=1, padl=0, padc=0, warm=0, ctl=1, wmin=16, wmax=24, sh=3, cb=16, glob=0, gper=2, gsh=0, gc=28, gws=0, al=0, cper=1, lw=0, prio=0, trace=0, tlb=0, noe=0, nopub=0, noq=0, pre=0, qlate=1, pws=0, pstart=0, lag2=1, gt1="-8,-5,-3,-1,1,3,5,8", gt2="-5,-3,-2,-1,1,2,3,5", g0=8, gd=3, qdma=1, epre=1, ppol="", lpol="sc1"):
    seq, first, slack = schedule(max(W, Wend, wmax), R)
    assert seq[-3:] == [12, 13, 15]
    SEQ = sum(b << (4 * i) for i, b in enumerate(seq))
    FL = sum(f << i for i, f in enumerate(first)) | (1 << 16)
    FL_LAST = FL | ((7 << 13) if split else 0)
    RB = R * 1024
    ES = 16 * 1040
    EOFF = RB
    SOFF = RB + 2 * ES
    COFF = SOFF + 3072
    QOFF = COFF + 16
    LDS = QOFF + (3072 if qdma else 0)
    assert not qdma or ctl
    Ws = list(range(wmin, wmax + 1)) if ctl else [W]
    assert LDS <= 163840
    pol = (" " + pol) if pol else ""
    epol = (" " + epol) if epol else ""
    spol = (" " + spol) if spol else ""
    L = []; e = L.append
    sTS = 64
    def ts(k):
        if stamp:
            e(f"    s_memrealtime s[{sTS+2*k}:{sTS+2*k+1}]")
    sD, sE, sQ, sO = 16, 20, 24, 28
    sW = 3
    e(HEADER.rstrip())
    e(f"; @launch grid=(256,1,1) block=({320 if ctl else 256},1,1) lds={LDS}")
    e('.amdgcn_target "amdgcn-amd-amdhsa--gfx950"')
    e(".text")
    e(f".globl {NAME}_kernel")
    e(".p2align 8")
    e(f".type {NAME}_kernel,@function")
    e(f"{NAME}_kernel:")
    e("    s_load_dwordx8 s[4:11], s[0:1], 0        ; q k v e")
    e("    s_load_dwordx4 s[12:15], s[0:1], 32      ; f out")
    if stamp:
        e(f"    s_load_dwordx2 s[60:61], s[0:1], 56")
        ts(0)
    e("    s_cmp_ge_u32 s2, 256")
    e("    s_cbranch_scc1 L_end")
    e(f"    v_readfirstlane_b32 s{sW}, v0")
    if lw:
        e("    v_and_b32 v0, 63, v0")
    e("    v_lshrrev_b32 v2, 4, v0")
    e("    v_lshlrev_b32 v1, 4, v0")
    e("    v_lshlrev_b32 v2, 5, v2")
    e("    s_mul_i32 s32, s2, 786432")
    e(f"    s_cmp_lg_u32 s{sW}, {64*lw}")
    e("    s_cbranch_scc1 L_cons")
    if prio:
        e(f"    s_setprio {prio}")
    sQi, sT = 35, 36
    sU = [40, 41, 42, 43]; mU = [44, 45, 46, 47]
    DU = (0, 4096, 32768, 36864)
    e("    v_xor_b32 v1, v1, v2")
    e(f"    s_mov_b32 s{sD+2}, 786432")
    e(f"    s_mov_b32 s{sD+3}, 0x20000")
    e(f"    s_mov_b32 s{sQi}, 0")
    for u in range(4):
        e(f"    s_mov_b32 s{sU[u]}, {DU[u]}")
        e(f"    s_mov_b32 s{mU[u]}, s{sU[u]}")
    e("    s_waitcnt lgkmcnt(0)")
    ts(1)
    e(f"    s_add_u32 s{sD}, s6, s32")
    e(f"    s_addc_u32 s{sD+1}, s7, 0")
    def load(u, i, Wx, bar=None):
        e(f"    s_mov_b32 m0, s{mU[u]}")
        e(f"    s_waitcnt vmcnt({Wx-1})")
        if bar == "cond":
            e(f"    s_cbranch_scc1 L_nobar{Wx}")
            e("    s_barrier")
            e(f"L_nobar{Wx}:")
        elif bar:
            e("    s_barrier")
        e(f"    buffer_load_dwordx4 v1, s[{sD}:{sD+3}], s{sU[u]} offen offset:{i*1024}{pol} lds")
    def upd(u):
        e(f"    s_add_u32 s{sU[u]}, s{sU[u]}, s{sT}")
        e(f"    s_add_u32 s{mU[u]}, s{mU[u]}, s{sT}")
        e(f"    s_sub_u32 s37, s{mU[u]}, {RB}")
        e(f"    s_cselect_b32 s{mU[u]}, s{mU[u]}, s37")
    def body(Wx, cond, rd=True, adv=True):
        bp = max(Wx - 17, 0)
        for pos in range(16):
            load(pos & 3, pos >> 2, Wx, (("cond" if cond else True) if pos == bp else None))
            if not adv:
                continue
            if pos == 8 and ctl and rd:
                e(f"    ds_read_b32 v3, v2")
            if pos == 10:
                assert not cond or bp < 10
                e(f"    s_add_u32 s{sQi}, s{sQi}, 1")
                e(f"    s_and_b32 s{sT}, s{sQi}, 3")
                e(f"    s_cselect_b32 s{sT}, 8, 40")
                e(f"    s_lshl_b32 s{sT}, s{sT}, 10")
            if pos == 11 and ctl and rd:
                e(f"    s_waitcnt lgkmcnt(0)")
                e(f"    v_readfirstlane_b32 s48, v3")
            if pos >= 12:
                upd(pos - 12)
    def advance():
        pass
    def tree(vals):
        if len(vals) == 1:
            e(f"    s_branch {'L_lgrp' if vals[0] == W else 'L_bodyW%d' % vals[0]}")
            return
        if len(vals) == 2:
            e(f"    s_cmp_eq_u32 s48, {vals[0]}")
            e(f"    s_cbranch_scc1 {'L_lgrp' if vals[0] == W else 'L_bodyW%d' % vals[0]}")
            tree(vals[1:])
            return
        h = len(vals) // 2
        lab = f"L_tree{vals[h]}_{len(vals)}"
        e(f"    s_cmp_ge_u32 s48, {vals[h]}")
        e(f"    s_cbranch_scc1 {lab}")
        tree(vals[:h])
        e(f"{lab}:")
        tree(vals[h:])
    for _ in range(padl):
        e("    s_nop 0")
    nend = max(nend, 1)
    if ctl:
        e(f"    v_mov_b32 v2, {COFF}")
        e(f"    v_mov_b32 v3, {W}")
        e(f"    ds_write_b32 v2, v3")
    e("L_lgrp:")
    e(f"    s_cmp_lt_u32 s{sQi}, 2")
    body(W, True)
    e("L_ltrail:")
    e(f"    s_cmp_lg_u32 s{sQi}, 48")
    e(f"    s_cbranch_scc1 L_lnosw")
    e(f"    s_add_u32 s{sD}, s8, s32")
    e(f"    s_addc_u32 s{sD+1}, s9, 0")
    for u in range(4):
        e(f"    s_mov_b32 s{sU[u]}, {DU[u]}")
    e("L_lnosw:")
    if ctl:
        e(f"    s_cmp_ge_u32 s{sQi}, {96-nend}")
        e(f"    s_cbranch_scc1 L_lendsel")
        tree(Ws)
        e("L_lendsel:")
    else:
        e(f"    s_cmp_lt_u32 s{sQi}, {96-nend}")
        e(f"    s_cbranch_scc1 L_lgrp")
    if nend > 1:
        e("L_lend:")
        body(Wend, False, rd=False)
        e(f"    s_cmp_lt_u32 s{sQi}, 95")
        e(f"    s_cbranch_scc1 L_lend")
    if split:
        order = [(0, i) for i in range(4)] + [(1, i) for i in range(4)] + [(u, i) for i in range(4) for u in (2, 3)]
        for pos, (u, i) in enumerate(order):
            load(u, i, Wend, True if pos == max(Wend - 17, 0) else None)
        for n in (16, 12, 8):
            e(f"    s_waitcnt vmcnt({n})")
            e("    s_barrier")
    else:
        body(Wend, False, adv=False)
        e("    s_waitcnt vmcnt(16)")
        e("    s_barrier")
    e("    s_waitcnt vmcnt(0)")
    ts(5)
    e("    s_barrier")
    if stamp:
        for k in (2, 3, 4):
            e(f"    s_mov_b32 s{sTS+2*k}, s{sTS}")
        e("    s_branch L_fin")
    else:
        e("    s_endpgm")
    if ctl:
        for Wx in Ws:
            if Wx != W:
                if al: e(f".p2align {al}")
                e(f"L_bodyW{Wx}:")
                body(Wx, False)
                e("    s_branch L_ltrail")
        if al: e(f".p2align {al}")
        e("L_ctl:")
        e(f"    s_load_dwordx2 s[16:17], s[0:1], {56 if pws else 48}")
        e("    s_mov_b32 s18, 256")
        e("    s_mov_b32 s19, 0x20000")
        e("    v_and_b32 v0, 63, v0")
        e("    v_lshlrev_b32 v1, 12, v0")
        e(f"    v_cmp_gt_u32 vcc, {33 if glob else 32}, v0")
        e("    v_mov_b32 v2, 0x1000")
        e("    s_lshr_b32 s20, s2, 3")
        e("    v_cndmask_b32 v2, v2, v0, vcc")
        e("    s_and_b32 s20, s20, 31")
        e(f"    v_mov_b32 v4, {COFF}")
        e("    s_mov_b32 s21, 1")
        e("    v_mov_b32 v5, 0")
        if glob:
            v = [int(x) & 0xff for x in gt1.split(",")]
            e(f"    s_mov_b32 s40, {sum(b << (8 * i) for i, b in enumerate(v[:4])):#x}")
            e(f"    s_mov_b32 s41, {sum(b << (8 * i) for i, b in enumerate(v[4:])):#x}")
        e("    s_waitcnt lgkmcnt(0)")
        if qdma:
            e("    s_mul_i32 s22, s2, 3072")
            e("    s_add_u32 s24, s4, s22")
            e("    s_addc_u32 s25, s5, 0")
            e("    s_mov_b32 s26, 3072")
            e("    s_mov_b32 s27, 0x20000")
            e(f"    s_mov_b32 m0, {QOFF}")
            e("    v_lshlrev_b32 v9, 4, v0")
            for k in range(3):
                e(f"    buffer_load_dwordx4 v9, s[24:27], 0 offen offset:{k*1024} nt lds")
        if epre:
            e("    s_mov_b32 s28, s10")
            e("    s_mov_b32 s29, s11")
            e("    s_mov_b32 s30, 65536")
            e("    s_mov_b32 s31, 0x20000")
            e("    s_lshl_b32 s22, s20, 11")
            e("    v_lshlrev_b32 v9, 5, v0")
            e("    buffer_load_dword v12, v9, s[28:31], s22 offen")
            e("    s_mov_b32 s28, s12")
            e("    s_mov_b32 s29, s13")
            e("    buffer_load_dword v13, v9, s[28:31], s22 offen")
        if pws:
            e("    s_getreg_b32 s22, hwreg(HW_REG_XCC_ID)")
            e("    s_and_b32 s22, s22, 15")
            e(f"    s_mul_i32 s22, s22, {pws}")
            e("    s_add_u32 s22, s22, 0x300000")
            e("    s_add_u32 s16, s16, s22")
            e("    s_addc_u32 s17, s17, 0")
        if pre:
            e("    buffer_load_sbyte v6, v2, s[16:19], 0 offen sc1")
        if trace:
            e(f"    v_mov_b32 v20, s{sTS}")
            e(f"    v_mov_b32 v21, 0")
        if tlb:
            e("    s_add_u32 s52, s8, s32")
            e("    s_addc_u32 s53, s9, 0")
            e("    s_mov_b32 s54, 786432")
            e("    s_mov_b32 s55, 0x20000")
            e("    v_lshlrev_b32 v23, 16, v0")
        def cbody(vr, tag):
            for _ in range(cper):
                e("    s_barrier")
            e(f"    s_waitcnt vmcnt({2 if lag2 else 0})")
            pass
            if trace:
                e("    s_memrealtime s[50:51]")
                e("    s_and_b32 m0, s21, 63")
                e("    s_cmp_ge_u32 s21, 64")
                e("    s_waitcnt lgkmcnt(0)")
                e(f"    s_cbranch_scc1 L_tr1{tag}")
                e("    v_writelane_b32 v20, s50, m0")
                e(f"    s_branch L_tr2{tag}")
                e(f"L_tr1{tag}:")
                e("    v_writelane_b32 v21, s50, m0")
                e(f"L_tr2{tag}:")
            if tlb:
                e(f"    s_cmp_lg_u32 s21, {tlb}")
                e(f"    s_cbranch_scc1 L_notlb{tag}")
                e("    buffer_load_dword v22, v23, s[52:55], 0 offen")
                e(f"L_notlb{tag}:")
            e("    v_mov_b32 v3, s21")
            e(f"    v_cmp_ne_u32 vcc, 0, v{vr}")
            e(f"    v_sub_u32 v6, v{vr}, v3")
            e(f"    v_add_u32 v6, {cper*(2 if lag2 else 1)}, v6")
            e("    v_cndmask_b32 v6, 0, v6, vcc")
            if glob:
                e(f"    v_readlane_b32 s26, v{vr}, 32")
            if pstart:
                e(f"    s_cmp_lt_u32 s21, {pstart}")
                e(f"    s_cbranch_scc1 L_nopub{tag}")
            if nopub in (0, 2):
                e(f"    buffer_store_byte v3, v1, s[16:19], s20 offen {ppol}")
            if nopub in (0, 3):
                e(f"    buffer_load_sbyte v{vr}, v2, s[16:19], 0 offen {lpol}")
            e(f"L_nopub{tag}:")
            for ctrl in ("row_shr:1", "row_shr:2", "row_shr:4", "row_shr:8"):
                e("    s_nop 1")
                e(f"    v_add_u32_dpp v6, v6, v6 {ctrl} row_mask:0xf bank_mask:0xf bound_ctrl:1")
            e("    s_nop 1")
            e("    v_readlane_b32 s22, v6, 15")
            e("    v_readlane_b32 s23, v6, 31")
            e(f"    s_add_u32 s21, s21, {cper}")
            e("    s_nop 0")
            e("    s_add_i32 s22, s22, s23")
            if glob:
                def pk(t):
                    v = [int(x) & 0xff for x in t.split(",")]
                    return sum(b << (8 * i) for i, b in enumerate(v[:4])), sum(b << (8 * i) for i, b in enumerate(v[4:]))
                e("    s_cmp_ge_u32 s2, 8")
                e(f"    s_cbranch_scc1 L_nolead{tag}")
                e(f"    s_sub_u32 s27, s21, {g0}")
                e(f"    s_and_b32 s27, s27, {gper-1}")
                e(f"    s_cbranch_scc1 L_lead2{tag}")
                e("    s_mov_b32 s29, 1")
                e("    s_atomic_add s29, s[16:17], 0x80 glc")
                e(f"    s_branch L_nolead{tag}")
                e(f"L_lead2{tag}:")
                e(f"    s_cmp_lg_u32 s27, {gd}")
                e(f"    s_cbranch_scc1 L_nolead{tag}")
                e(f"    s_cmp_lt_u32 s21, {g0}")
                e(f"    s_cbranch_scc1 L_nolead{tag}")
                e("    s_waitcnt lgkmcnt(0)")
                e("    s_and_b32 s27, s29, 7")
                e("    s_lshl_b32 s27, s27, 3")
                e("    s_lshr_b64 s[30:31], s[40:41], s27")
                a, b = pk(gt2)
                e(f"    s_mov_b32 s40, {a:#x}")
                e(f"    s_mov_b32 s41, {b:#x}")
                e("    v_mov_b32 v11, s30")
                e("    buffer_store_byte v11, v1, s[16:19], 0 offen offset:32")
                e(f"L_nolead{tag}:")
                e("    s_add_i32 s22, s22, s26")
            e(f"    s_add_i32 s22, s22, {cb}")
            e(f"    s_ashr_i32 s22, s22, {sh}")
            e(f"    s_add_i32 s22, s22, {W}")
            e(f"    s_max_i32 s22, s22, {wmin}")
            e(f"    s_min_i32 s22, s22, {wmax}")
            e(f"    s_cmp_lt_u32 s21, {2+(3 if lag2 else 2)*cper}")
            e(f"    s_cselect_b32 s22, {W}, s22")
            e("    v_mov_b32 v7, s22")
            e("    ds_write_b32 v4, v7")
            if stamp:
                e(f"    s_add_u32 s{sTS+4}, s{sTS+4}, s22")

        e("    v_mov_b32 v8, 0")
        e("L_cgrp:")
        cbody(5, "a")
        if lag2:
            cbody(8, "b")
        e(f"    s_cmp_lt_u32 s21, {96-nend-cper}")
        e("    s_cbranch_scc1 L_cgrp")
        if trace:
            e(f"    s_mov_b32 s62, 0x200000")
            e(f"    s_mov_b32 s63, 0x20000")
            e(f"    s_lshl_b32 s50, s2, 9")
            e(f"    s_add_u32 s50, s50, 0x100000")
            e(f"    v_lshlrev_b32 v22, 2, v0")
            e(f"    buffer_store_dword v20, v22, s[60:63], s50 offen")
            e(f"    buffer_store_dword v21, v22, s[60:63], s50 offen offset:256")
        if stamp and trace:
            e(f"    s_mov_b32 s{sTS+6}, s{sTS}")
            e(f"    s_mov_b32 s{sTS+8}, s{sTS}")
            e(f"    s_mov_b32 s{sTS+2}, s{sTS}")
            e("    s_branch L_fin")
        else:
            e("    s_endpgm")
    sC, sP, sP0, sEo, sEn, sFl, sSeq, sB, sT2 = 33, 34, 37, 38, 39, 40, 42, 45, 46
    sSC, sL2E, sMSK, sER, sEs = 47, 48, 49, 51, 52
    vA = [4, 5, 6, 7]; vB = [8, 9, 10, 11]; vE0, vE, vL16, vQo, vSR = 12, 13, 14, 15, 3
    vP, vQD, ACC, TT, EE = 16, 20, 28, 44, 60
    NV = 64
    if al: e(f".p2align {al}")
    e("L_cons:")
    if ctl:
        if stamp:
            e(f"    s_waitcnt lgkmcnt(0)")
            e(f"    s_mov_b32 s{sTS+4}, s{sTS}")
        e(f"    s_cmp_eq_u32 s{sW}, 256")
        e(f"    s_cbranch_scc1 L_ctl")
    e(f"    s_lshr_b32 s{sC}, s{sW}, 6")
    if lw == 0:
        e(f"    s_sub_u32 s{sC}, s{sC}, 1")
    else:
        e(f"    s_cmp_gt_u32 s{sC}, {lw}")
        e(f"    s_subb_u32 s{sC}, s{sC}, 0")
    e("    v_and_b32 v0, 63, v0")
    e(f"    v_lshlrev_b32 v{vL16}, 4, v0")
    def eload0():
        e(f"    s_mov_b32 s{sE+2}, 65536")
        e(f"    s_mov_b32 s{sE+3}, 0x20000")
        e(f"    s_mul_i32 s{sT}, s{sC}, 1040")
        e(f"    s_add_u32 s{sT}, s{sT}, {EOFF}")
        e(f"    s_lshl_b32 s{sT2}, s{sC}, 12")
        e("    s_waitcnt lgkmcnt(0)")
        ts(1)
        e(f"    s_mov_b32 s{sE}, s10")
        e(f"    s_mov_b32 s{sE+1}, s11")
        for k in range(6):
            if k == 5:
                e(f"    s_cmp_lg_u32 s{sC}, 0")
                e(f"    s_cbranch_scc1 L_e0done")
            e(f"    s_add_u32 m0, s{sT}, {3*k*1040}")
            e(f"    s_add_u32 s{sB}, s{sT2}, {3*k*4096}")
            if not (noe & 1):
                e(f"    buffer_load_dwordx4 v{vL16}, s[{sE}:{sE+3}], s{sB} offen{epol} lds")
        e("L_e0done:")
        e("    s_mul_i32 s32, s2, 3072")
        e(f"    s_add_u32 s{sQ}, s4, s32")
        e(f"    s_addc_u32 s{sQ+1}, s5, 0")
        e(f"    s_mov_b32 s{sQ+2}, 3072")
        e(f"    s_mov_b32 s{sQ+3}, 0x20000")
        e(f"    s_add_u32 s{sO}, s14, s32")
        e(f"    s_addc_u32 s{sO+1}, s15, 0")
        e(f"    s_mov_b32 s{sO+2}, {3072 if warm else 0}")
        e(f"    s_mov_b32 s{sO+3}, 0x20000")
    def qload():
        for t in range(0 if noq else 4):
            e(f"    buffer_load_dwordx2 v[{vQD+2*t}:{vQD+2*t+1}], v{vQo}, s[{sQ}:{sQ+3}], 0 offen offset:{32*t}")
    if not elate:
        eload0()
    e("    v_and_b32 v1, 15, v0                      ; j / r / q")
    e("    v_lshrrev_b32 v2, 4, v0                   ; g")
    e(f"    v_mul_u32_u24 v{vQo}, 0x180, v1")
    e(f"    s_lshl_b32 s{sT}, s{sC}, 7")
    e(f"    v_lshl_add_u32 v{vQo}, v2, 3, v{vQo}")
    e(f"    v_add_u32 v{vQo}, s{sT}, v{vQo}")
    if not elate and not qlate and not qdma:
        qload()
    e(f"    v_mul_u32_u24 v{vE0}, 0x410, v1")
    e(f"    v_lshl_add_u32 v{vE0}, v2, 3, v{vE0}")
    e(f"    v_lshrrev_b32 v{vA[1]}, 2, v0")
    e(f"    v_mul_u32_u24 v{vA[1]}, 3, v{vA[1]}")
    e(f"    v_add_u32 v{vA[1]}, s{sC}, v{vA[1]}          ; L")
    e(f"    v_bfe_u32 v{vA[2]}, v{vA[1]}, 1, 2")
    e(f"    v_lshlrev_b32 v{vA[2]}, 5, v{vA[2]}")
    e(f"    v_lshl_add_u32 v{vA[2]}, v{vA[1]}, 7, v{vA[2]}")
    e(f"    v_and_b32 v{vA[3]}, 3, v0")
    e(f"    v_lshl_add_u32 v{vA[0]}, v{vA[3]}, 3, v{vA[2]}")
    for t in range(1, 4):
        e(f"    v_xor_b32 v{vA[t]}, {32*t}, v{vA[0]}")
    e(f"    v_add_u32 v{vSR}, {SOFF}, v{vL16}")
    e(f"    v_lshlrev_b32 v2, 2, v2")
    e(f"    v_sub_u32 v2, v1, v2                      ; col - 4g")
    e(f"    v_mov_b32 v{TT}, 0x3f80")
    e(f"    v_mov_b32 v{TT+1}, 0x3f800000")
    e(f"    v_mov_b32 v{vP}, 0")
    e(f"    v_mov_b32 v{vP+1}, 0")
    for k in range(4):
        e(f"    v_cmp_eq_u32 vcc, {k}, v2")
        e(f"    s_nop 1")
        e(f"    v_cndmask_b32 v{vP+(k>>1)}, v{vP+(k>>1)}, v{TT+(k&1)}, vcc")
    e(f"    s_mov_b32 s{sSC}, 0x3d93cd3a               ; 192^-0.5")
    e(f"    s_mov_b32 s{sL2E}, 0x3fb8aa3b              ; log2(e)")
    e(f"    s_mov_b32 s{sMSK}, 0xffff0000")
    e(f"    s_mov_b32 s{sP}, 0")
    e(f"    s_mov_b32 s{sP0}, 0")
    e(f"    s_mov_b32 s{sEo}, {EOFF}")
    e(f"    s_mov_b32 s{sEn}, {EOFF+ES}")
    for r in range(16):
        e(f"    v_mov_b32 v{ACC+r}, 0")
    if elate:
        eload0()
        if not qlate and not qdma: qload()
    for _ in range(padc):
        e("    s_nop 0")
    e("L_period:")
    e(f"    s_mov_b32 s{sSeq}, {SEQ & 0xffffffff:#x}")
    e(f"    s_mov_b32 s{sSeq+1}, {SEQ >> 32:#x}")
    e(f"    s_mov_b32 s{sFl}, {FL:#x}")
    e(f"    s_mov_b32 s{sER}, s{sC}")
    e(f"    s_add_u32 s{sEs}, s{sP}, 1")
    e(f"    s_and_b32 s{sEs}, s{sEs}, 3")
    e(f"    s_cbranch_scc1 L_nosw")
    e(f"    s_mov_b32 s{sE}, s12")
    e(f"    s_mov_b32 s{sE+1}, s13")
    e("L_nosw:")
    e(f"    s_lshl_b32 s{sEs}, s{sEs}, 10")
    e(f"    s_cmp_eq_u32 s{sP}, 7")
    e(f"    s_cselect_b32 s{sER}, 16, s{sER}")
    e(f"    s_cselect_b32 s{sFl}, {FL_LAST:#x}, s{sFl}")
    e("    s_barrier")
    if stamp:
        e(f"    s_cmp_lg_u32 s{sP}, 0")
        e(f"    s_cbranch_scc1 L_nots2")
        ts(2)
        e("L_nots2:")
    e(f"    s_cmp_eq_u32 s{sP}, 4")
    e(f"    s_cbranch_scc1 L_softmax")
    e("L_q0done:")
    e("    s_waitcnt vmcnt(0)")
    if qlate and not qdma:
        e(f"    s_cmp_lg_u32 s{sP}, 1")
        e(f"    s_cbranch_scc1 L_block")
        qload()
    if qdma:
        e(f"    s_cmp_lg_u32 s{sP}, 1")
        e(f"    s_cbranch_scc1 L_block")
        e(f"    v_and_b32 v1, 7, v0")
        e(f"    v_mul_u32_u24 v1, 0x180, v1")
        e(f"    v_lshrrev_b32 v2, 4, v0")
        e(f"    v_lshl_add_u32 v1, v2, 3, v1")
        e(f"    s_lshl_b32 s{sT}, s{sC}, 7")
        e(f"    s_add_u32 s{sT}, s{sT}, {QOFF}")
        e(f"    v_add_u32 v1, s{sT}, v1")
        for t in range(4):
            e(f"    ds_read_b64 v[{vQD+2*t}:{vQD+2*t+1}], v1 offset:{32*t}")
    e("L_block:")
    e(f"    s_and_b32 s{sB}, s{sSeq}, 15")
    e(f"    s_lshr_b64 s[{sSeq}:{sSeq+1}], s[{sSeq}:{sSeq+1}], 4")
    e(f"    s_lshl_b32 s{sT2}, s{sB}, 6")
    e(f"    s_add_u32 s{sT2}, s{sT2}, s{sEo}")
    e(f"    s_mul_i32 s{sB}, s{sB}, 12288")
    e(f"    v_add_u32 v{vE}, s{sT2}, v{vE0}")
    e(f"    s_add_u32 s{sB}, s{sB}, s{sP0}")
    for _ in range(2):
        e(f"    s_sub_u32 s{sT}, s{sB}, {RB}")
        e(f"    s_cselect_b32 s{sB}, s{sB}, s{sT}")
    for t in range(4):
        e(f"    v_add_u32 v{vB[t]}, s{sB}, v{vA[t]}")
    e(f"    s_bitcmp0_b32 s{sFl}, 0")
    e(f"    s_cbranch_scc1 L_nobarc")
    e("    s_barrier")
    e("L_nobarc:")
    e(f"    ds_read_b64 v[{EE}:{EE+1}], v{vE}")
    e(f"    ds_read_b64 v[{EE+2}:{EE+3}], v{vE} offset:32")
    for t in range(4):
        e(f"    ds_read_b64_tr_b16 v[{TT+4*t}:{TT+4*t+1}], v{vB[t]}")
        e(f"    ds_read_b64_tr_b16 v[{TT+4*t+2}:{TT+4*t+3}], v{vB[t]} offset:6144")
    e(f"    s_cmp_ge_u32 s{sER}, 16")
    e(f"    s_cbranch_scc1 L_noe")
    e(f"    s_mul_i32 s{sT}, s{sER}, 1040")
    e(f"    s_add_u32 m0, s{sT}, s{sEn}")
    e(f"    s_lshl_b32 s{sT}, s{sER}, 12")
    e(f"    s_add_u32 s{sT}, s{sT}, s{sEs}")
    e(f"    s_add_u32 s{sER}, s{sER}, 3")
    if not (noe & 2):
        e(f"    buffer_load_dwordx4 v{vL16}, s[{sE}:{sE+3}], s{sT} offen{epol} lds")
    e("L_noe:")
    e(f"    s_lshr_b32 s{sFl}, s{sFl}, 1")
    e(f"    s_cmp_lg_u32 s{sFl}, 1")
    for t in range(4):
        e(f"    s_waitcnt lgkmcnt({6-2*t})")
        e(f"    v_mfma_f32_16x16x32_bf16 v[{ACC+4*t}:{ACC+4*t+3}], v[{EE}:{EE+3}], v[{TT+4*t}:{TT+4*t+3}], v[{ACC+4*t}:{ACC+4*t+3}]")
    e(f"    s_cbranch_scc1 L_block")
    e(f"    s_add_u32 s{sP}, s{sP}, 1")
    e(f"    s_and_b32 s{sT}, s{sP}, 3")
    e(f"    s_cbranch_scc1 L_nextp")
    if stamp:
        e(f"    s_cmp_lg_u32 s{sP}, 4")
        e(f"    s_cbranch_scc1 L_nots3")
        ts(3)
        e("L_nots3:")
    A0 = TT; D0 = ACC; R0 = TT + 8
    e("    s_nop 0")
    for k in range(8):
        e(f"    v_cvt_pk_bf16_f32 v{A0+k}, v{ACC+2*k}, v{ACC+2*k+1}")
    e(f"    s_cmp_eq_u32 s{sP}, 8")
    for t in range(4):
        e(f"    v_mfma_f32_16x16x16_bf16 v[{D0+4*t}:{D0+4*t+3}], v[{A0+2*t}:{A0+2*t+1}], v[{vP}:{vP+1}], 0")
    e("    s_nop 4")
    for t in range(4):
        e(f"    v_cvt_pk_bf16_f32 v{R0+2*t}, v{D0+4*t}, v{D0+4*t+1}")
        e(f"    v_cvt_pk_bf16_f32 v{R0+2*t+1}, v{D0+4*t+2}, v{D0+4*t+3}")
        e(f"    buffer_store_dwordx2 v[{R0+2*t}:{R0+2*t+1}], v{vQo}, s[{sO}:{sO+3}], 0 offen offset:{32*t}{spol}")
    e(f"    s_cbranch_scc1 L_fin")
    S0 = EE
    e(f"    v_mfma_f32_16x16x32_bf16 v[{S0}:{S0+3}], v[{R0}:{R0+3}], v[{vQD}:{vQD+3}], 0")
    e(f"    v_mfma_f32_16x16x32_bf16 v[{S0}:{S0+3}], v[{R0+4}:{R0+7}], v[{vQD+4}:{vQD+7}], v[{S0}:{S0+3}]")
    e(f"    s_lshl_b32 s{sT}, s{sC}, 10")
    e(f"    v_add_u32 v{vE}, s{sT}, v{vSR}")
    for r in range(16):
        e(f"    v_mov_b32 v{ACC+r}, 0")
    e(f"    ds_write_b128 v{vE}, v[{S0}:{S0+3}]")
    e(f"    s_mov_b32 s{sO+2}, 3072")
    e("    s_waitcnt lgkmcnt(0)")
    e("L_nextp:")
    e(f"    s_add_u32 s{sP0}, s{sP0}, {196608 - RB}")
    e(f"    s_sub_u32 s{sT}, s{sP0}, {RB}")
    e(f"    s_cselect_b32 s{sP0}, s{sP0}, s{sT}")
    e(f"    s_mov_b32 s{sT}, s{sEo}")
    e(f"    s_mov_b32 s{sEo}, s{sEn}")
    e(f"    s_mov_b32 s{sEn}, s{sT}")
    e(f"    s_branch L_period")
    e("L_softmax:")
    X = TT; Y = TT + 12
    for m in range(3):
        e(f"    ds_read_b128 v[{X+4*m}:{X+4*m+3}], v{vSR} offset:{m*1024}")
    for m in range(1, 3):
        e(f"    s_waitcnt lgkmcnt({2-m})")
        for k in range(4):
            e(f"    v_add_f32 v{X+k}, v{X+k}, v{X+4*m+k}")
    def round4():
        e(f"    v_cvt_pk_bf16_f32 v{Y}, v{X}, v{X+1}")
        e(f"    v_cvt_pk_bf16_f32 v{Y+1}, v{X+2}, v{X+3}")
        e(f"    v_lshlrev_b32 v{X}, 16, v{Y}")
        e(f"    v_and_b32 v{X+1}, s{sMSK}, v{Y}")
        e(f"    v_lshlrev_b32 v{X+2}, 16, v{Y+1}")
        e(f"    v_and_b32 v{X+3}, s{sMSK}, v{Y+1}")
    round4()
    for i in range(4):
        e(f"    v_mul_f32 v{X+i}, s{sSC}, v{X+i}")
    round4()
    def allreduce(op):
        for sw in ("v_permlane16_swap_b32", "v_permlane32_swap_b32"):
            e(f"    v_mov_b32 v{Y+1}, v{Y}")
            e(f"    s_nop 1")
            e(f"    {sw} v{Y}, v{Y+1}")
            e(f"    s_nop 1")
            e(f"    {op} v{Y}, v{Y}, v{Y+1}")
    e(f"    v_max3_f32 v{Y}, v{X}, v{X+1}, v{X+2}")
    e(f"    v_max_f32 v{Y}, v{Y}, v{X+3}")
    allreduce("v_max_f32")
    for i in range(4):
        e(f"    v_sub_f32 v{X+i}, v{X+i}, v{Y}")
    for i in range(4):
        e(f"    v_mul_f32 v{X+i}, s{sL2E}, v{X+i}")
    for i in range(4):
        e(f"    v_exp_f32 v{X+i}, v{X+i}")
    e("    s_nop 0")
    e(f"    v_add_f32 v{Y}, v{X}, v{X+1}")
    e(f"    v_add_f32 v{Y+2}, v{X+2}, v{X+3}")
    e(f"    v_add_f32 v{Y}, v{Y}, v{Y+2}")
    allreduce("v_add_f32")
    e(f"    v_rcp_f32 v{Y}, v{Y}")
    e("    s_nop 0")
    for i in range(4):
        e(f"    v_mul_f32 v{X+i}, v{X+i}, v{Y}")
    e(f"    v_cvt_pk_bf16_f32 v{vP}, v{X}, v{X+1}")
    e(f"    v_cvt_pk_bf16_f32 v{vP+1}, v{X+2}, v{X+3}")
    ts(4)
    e(f"    s_branch L_q0done")
    e("L_fin:")
    if stamp:
        e(f"    s_cmp_eq_u32 s{sW}, {64*lw}")
        e(f"    s_cbranch_scc1 L_fin2")
        e(f"    s_mov_b32 s{sTS+10}, s{sTS}")
        e("L_fin2:")
        e("    s_waitcnt vmcnt(0)")
        ts(6)
        e(f"    s_getreg_b32 s{sTS+14}, hwreg(HW_REG_XCC_ID)")
        e(f"    s_getreg_b32 s{sT}, hwreg(HW_REG_HW_ID)")
        e(f"    s_and_b32 s{sTS+14}, s{sTS+14}, 15")
        e(f"    s_lshl_b32 s{sT}, s{sT}, 4")
        e(f"    s_or_b32 s{sTS+14}, s{sTS+14}, s{sT}")
        e(f"    s_mov_b32 s62, 0x100000")
        e(f"    s_mov_b32 s63, 0x20000")
        e("    s_waitcnt lgkmcnt(0)")
        for k in range(8):
            e(f"    v_mov_b32 v{ACC+k}, s{sTS+2*k}")
        e(f"    s_mul_i32 s{sT}, s2, {160 if ctl else 128}")
        e(f"    s_lshr_b32 s{sW}, s{sW}, 1")
        e(f"    s_add_u32 s{sT}, s{sT}, s{sW}")
        e(f"    v_mov_b32 v2, s{sT}")
        e(f"    buffer_store_dwordx4 v[{ACC}:{ACC+3}], v2, s[60:63], 0 offen")
        e(f"    buffer_store_dwordx4 v[{ACC+4}:{ACC+7}], v2, s[60:63], 0 offen offset:16")
    e("L_end:")
    e("    s_endpgm")
    e('.section .rodata,"a"')
    e(".p2align 6")
    e(f".amdhsa_kernel {NAME}_kernel")
    e(f"  .amdhsa_next_free_vgpr {NV}")
    e(f"  .amdhsa_next_free_sgpr 80")
    e(f"  .amdhsa_accum_offset {(NV+3)//4*4}")
    e("  .amdhsa_group_segment_fixed_size 0")
    e("  .amdhsa_kernarg_size 64")
    e("  .amdhsa_user_sgpr_count 2")
    e("  .amdhsa_user_sgpr_kernarg_segment_ptr 1")
    e("  .amdhsa_system_sgpr_workgroup_id_x 1")
    e("  .amdhsa_float_denorm_mode_32 3")
    e(".end_amdhsa_kernel")
    return "\n".join(L) + "\n"

if __name__ == "__main__":
    ap = argparse.ArgumentParser()
    ap.add_argument("-o", default="-")
    for k, d in dict(W=19, R=120, Wend=32, nend=4, split=1, elate=1, padl=0, padc=0, warm=0, ctl=1, wmin=16, wmax=24, sh=3, cb=16, glob=0, gper=2, gsh=0, gc=28, gws=0, al=0, cper=1, lw=0, prio=0, trace=0, tlb=0, noe=0, nopub=0, noq=0, pre=0, qlate=1, pws=0, pstart=0, lag2=1, g0=8, gd=3, qdma=1, epre=1).items():
        ap.add_argument("--" + k, type=int, default=d)
    for k, d in dict(pol="nt", epol="", spol="", ppol="", lpol="sc1", gt1="-8,-5,-3,-1,1,3,5,8", gt2="-5,-3,-2,-1,1,2,3,5").items():
        ap.add_argument("--" + k, default=d)
    ap.add_argument("--stamp", action="store_true")
    a = vars(ap.parse_args()); o = a.pop("o")
    for k in ("pol", "epol", "spol", "ppol", "lpol"): a[k] = a[k].replace("+", " ")
    (sys.stdout if o == "-" else open(o, "w")).write(gen(**a))
```

```python
import sys, argparse

NAME = "standalone__low_rank_proj_linformer__sampling"
HEADER = """; Kernarg layout for this problem (64 bytes, ptrs only, base s[0:1]):
"""
DOC = """;
"""

def schedule(W, R):
    def grp(x):
        return 4 * (x // 64) + (x % 32) // 8
    done = [max(grp(x) for x in range(12 * b, 12 * b + 12)) for b in range(128)]
    slack = min(16 * grp(x + R) - (16 * (done[x // 12] + 1) + 15 + W) for x in range(1536 - R))
    assert slack >= 0, slack
    seq = sorted(range(16), key=lambda b: (done[b], b))
    first = [int(i == 0 or done[seq[i]] != done[seq[i - 1]]) for i in range(16)]
    assert sorted(set(done[:16])) == list(range(1, 12))
    return seq, first, slack

def gen(W=19, R=120, Wend=32, nend=4, Wbeg=19, wmin=16, wmax=24, sh=3, cb=16, al=6, rng=8, ema=0, integ=0, diag=0, esm=1, erot=0, xw=0, nvg=64, fast0=0, sdiag=0, cpf=0, qpos=1, elate=1, stamp=False):
    seq, first, slack = schedule(max(W, Wend, wmax), R)
    assert seq[-3:] == [12, 13, 15] and nend >= 2
    SEQ = sum(b << (4 * i) for i, b in enumerate(seq))
    FL = sum(f << i for i, f in enumerate(first)) | (1 << 16)
    FL_LAST = FL | (7 << 13)
    RB = R * 1024
    ES = 16 * 1040
    EOFF = RB
    SOFF = RB + 2 * ES
    COFF = SOFF + 3072
    QOFF = COFF + 16
    LDS = QOFF + 3072
    assert LDS <= 163840
    Ws = list(range(wmin, wmax + 1))
    L = []; e = L.append
    sTS = 64
    def ts(k):
        if stamp:
            e(f"    s_memrealtime s[{sTS+2*k}:{sTS+2*k+1}]")
    def align():
        if al: e(f".p2align {al}")
    sD, sE, sO = 16, 20, 28
    sW = 3
    e(HEADER.rstrip())
    e(f"; @launch grid=(256,1,1) block=({320+64*xw},1,1) lds={LDS}")
    e(DOC.rstrip())
    e('.amdgcn_target "amdgcn-amd-amdhsa--gfx950"')
    e(".text")
    e(f".globl {NAME}_kernel")
    e(".p2align 8")
    e(f".type {NAME}_kernel,@function")
    e(f"{NAME}_kernel:")
    sQi, sT = 35, 36
    sU = [40, 41, 42, 43]; mU = [44, 45, 46, 47]
    DU = (0, 4096, 32768, 36864)
    if fast0:
        e("    s_load_dwordx8 s[4:11], s[0:1], 0          ; q k v e")
        if stamp: ts(0)
        if cpf:
            e("    s_getpc_b64 s[20:21]")
            e("L_pc:")
            e("    s_movk_i32 s23, 0xe000")
            e("    s_mov_b32 s22, L_end - L_pc")
            e("    v_lshl_add_u32 v3, v0, 7, s23")
            e("    s_mov_b32 s23, 0x20000")
            e("    buffer_load_dword v63, v3, s[20:23], 0 offen")
        e(f"    v_readfirstlane_b32 s{sW}, v0               ; 64 * wave")
        e("    v_and_b32 v2, 48, v0")
        e("    v_lshlrev_b32 v1, 3, v0")
        e("    s_cmpk_ge_u32 s2, 0x100")
        e("    s_cbranch_scc1 L_end")
        e("    s_mul_i32 s32, s2, 786432")
        e(f"    s_cmp_lg_u32 s{sW}, 0")
        e("    s_cbranch_scc1 L_cons")
        e("; ---------------- loader")
        e("    v_xor_b32 v1, v1, v2")
        e(f"    s_mov_b32 s{sD+2}, 786432")
        e("    v_lshlrev_b32 v1, 1, v1")
        e(f"    s_mov_b32 s{sD+3}, 0x20000")
        e(f"    s_movk_i32 s{sU[1]}, 0x1000")
        e(f"    s_lshl_b32 s{sU[2]}, s{sU[1]}, 3")
        e(f"    s_mov_b32 m0, 0")
        e("    s_waitcnt lgkmcnt(0)")
        ts(1)
        e(f"    s_add_u32 s{sD}, s6, s32")
        e(f"    s_addc_u32 s{sD+1}, s7, 0")
        e("L_first:                                       ; group 0: ring offset = memory offset, one register serves both")
        for k, x in enumerate((sU[1], sU[2], sU[1], sU[2])):
            e(f"    buffer_load_dwordx4 v1, s[{sD}:{sD+3}], m0 offen nt lds")
            e(f"    s_xor_b32 m0, m0, s{x}")
            if k < 3: e("    s_nop 0")
        e("    s_addk_i32 m0, 0x400")
        e(f"    s_cmp_lg_u32 m0, s{sU[1]}")
        e("    s_cbranch_scc1 L_first")
        ts(2)
        if stamp:
            e(f"    s_load_dwordx2 s[60:61], s[0:1], 56")
        e(f"    s_mov_b32 s{sQi}, 1")
        for u in range(4):
            e(f"    s_mov_b32 s{sU[u]}, {DU[u]+8192}")
            e(f"    s_mov_b32 s{mU[u]}, s{sU[u]}")
        e(f"    v_mov_b32 v2, {COFF}")
        e(f"    v_mov_b32 v3, {W}")
    else:
        e("    s_load_dwordx8 s[4:11], s[0:1], 0          ; q k v e")
        e("    s_load_dwordx4 s[12:15], s[0:1], 32        ; f out")
        if stamp:
            e(f"    s_load_dwordx2 s[60:61], s[0:1], 56")
            ts(0)
        e("    s_cmp_ge_u32 s2, 256")
        e("    s_cbranch_scc1 L_end")
        e(f"    v_readfirstlane_b32 s{sW}, v0               ; 64 * wave")
        e("    v_lshrrev_b32 v2, 4, v0")
        e("    v_lshlrev_b32 v1, 4, v0")
        e("    v_lshlrev_b32 v2, 5, v2")
        e("    s_mul_i32 s32, s2, 786432")
        e(f"    s_cmp_lg_u32 s{sW}, 0")
        e("    s_cbranch_scc1 L_cons")
        sQi, sT = 35, 36
        sU = [40, 41, 42, 43]; mU = [44, 45, 46, 47]
        DU = (0, 4096, 32768, 36864)
        e("; ---------------- loader")
        e("    v_xor_b32 v1, v1, v2")
        e(f"    s_mov_b32 s{sD+2}, 786432")
        e(f"    s_mov_b32 s{sD+3}, 0x20000")
        e(f"    s_mov_b32 s{sQi}, 0")
        for u in range(4):
            e(f"    s_mov_b32 s{sU[u]}, {DU[u]}")
            e(f"    s_mov_b32 s{mU[u]}, s{sU[u]}")
        e(f"    v_mov_b32 v2, {COFF}")
        e(f"    v_mov_b32 v3, {W}")
        e("    s_waitcnt lgkmcnt(0)")
        ts(1)
        e(f"    s_add_u32 s{sD}, s6, s32")
        e(f"    s_addc_u32 s{sD+1}, s7, 0")
    def load(u, i, Wx, bar=False):
        e(f"    s_mov_b32 m0, s{mU[u]}")
        e(f"    s_waitcnt vmcnt({Wx-1})")
        if bar:
            e("    s_barrier")
        e(f"    buffer_load_dwordx4 v1, s[{sD}:{sD+3}], s{sU[u]} offen offset:{i*1024} nt lds")
    def body(Wx, bar=True, rd=True, init=False):
        bp = max(Wx - 17, 0)
        for pos in range(16):
            load(pos & 3, pos >> 2, Wx, bar and pos == bp)
            if pos == 4 and init:
                e(f"    ds_write_b32 v2, v3")
            if pos == 8 and rd:
                e(f"    ds_read_b32 v3, v2")
            if pos == 10:
                e(f"    s_add_u32 s{sQi}, s{sQi}, 1")
                e(f"    s_and_b32 s{sT}, s{sQi}, 3")
                e(f"    s_cselect_b32 s{sT}, 8, 40")
                e(f"    s_lshl_b32 s{sT}, s{sT}, 10")
            if pos == 11 and rd:
                e(f"    s_waitcnt lgkmcnt(0)")
                e(f"    v_readfirstlane_b32 s48, v3")
            if pos >= 12:
                u = pos - 12
                e(f"    s_add_u32 s{sU[u]}, s{sU[u]}, s{sT}")
                e(f"    s_add_u32 s{mU[u]}, s{mU[u]}, s{sT}")
                e(f"    s_sub_u32 s37, s{mU[u]}, {RB}")
                e(f"    s_cselect_b32 s{mU[u]}, s{mU[u]}, s37")
    def tree(vals):
        if len(vals) == 1:
            e(f"    s_branch L_body{vals[0]}")
            return
        if len(vals) == 2:
            e(f"    s_cmp_eq_u32 s48, {vals[0]}")
            e(f"    s_cbranch_scc1 L_body{vals[0]}")
            tree(vals[1:])
            return
        h = len(vals) // 2
        lab = f"L_tree{vals[h]}_{len(vals)}"
        e(f"    s_cmp_ge_u32 s48, {vals[h]}")
        e(f"    s_cbranch_scc1 {lab}")
        tree(vals[:h])
        e(f"{lab}:")
        tree(vals[h:])
    e("L_lbeg:                                        ; groups 0 and 1: nothing to publish yet")
    body(Wbeg, bar=False, rd=False, init=True)
    if stamp and not fast0:
        e(f"    s_cmp_lg_u32 s{sQi}, 1")
        e(f"    s_cbranch_scc1 L_nots2l")
        ts(2)
        e("L_nots2l:")
    e(f"    s_cmp_lt_u32 s{sQi}, 2")
    e(f"    s_cbranch_scc1 L_lbeg")
    if sdiag: ts(3)
    e(f"    s_waitcnt lgkmcnt(0)")
    e(f"L_body{W}:")
    body(W)
    e("L_ltrail:")
    e(f"    s_cmp_lg_u32 s{sQi}, 48")
    e(f"    s_cbranch_scc1 L_lnosw")
    e(f"    s_add_u32 s{sD}, s8, s32")
    e(f"    s_addc_u32 s{sD+1}, s9, 0")
    for u in range(4):
        e(f"    s_mov_b32 s{sU[u]}, {DU[u]}")
    e("L_lnosw:")
    e(f"    s_cmp_ge_u32 s{sQi}, {96-nend}")
    e(f"    s_cbranch_scc1 L_lend")
    tree(Ws)
    e("L_lend:                                        ; last groups: widest window")
    body(Wend, rd=False)
    e(f"    s_cmp_lt_u32 s{sQi}, 95")
    e(f"    s_cbranch_scc1 L_lend")
    order = [(0, i) for i in range(4)] + [(1, i) for i in range(4)] + [(u, i) for i in range(4) for u in (2, 3)]
    for pos, (u, i) in enumerate(order):
        load(u, i, Wend, pos == max(Wend - 17, 0))
    for n in (16, 12, 8):
        e(f"    s_waitcnt vmcnt({n})")
        e("    s_barrier")
    e("    s_waitcnt vmcnt(0)")
    ts(5)
    e("    s_barrier")
    if stamp:
        for k in ((4,) if sdiag else (3, 4)):
            e(f"    s_mov_b32 s{sTS+2*k}, s{sTS}")
        e("    s_branch L_fin")
    else:
        e("    s_endpgm")
    for Wx in Ws:
        if Wx != W:
            align()
            e(f"L_body{Wx}:")
            body(Wx)
            e("    s_branch L_ltrail")
    align()
    e("; ---------------- balancer")
    e("L_ctl:")
    e("    s_load_dwordx2 s[16:17], s[0:1], 48        ; d_debug")
    e("    s_mov_b32 s18, 256")
    e("    s_mov_b32 s19, 0x20000")
    e("    v_and_b32 v0, 63, v0")
    e("    v_lshlrev_b32 v1, 12, v0")
    e("    s_getreg_b32 s20, hwreg(HW_REG_HW_ID, 8, 7)")
    e("    v_lshlrev_b32 v9, 4, v0")
    e("    s_lshr_b32 s21, s20, 5")
    e("    s_and_b32 s20, s20, 15")
    e("    s_lshl_b32 s21, s21, 4")
    e("    s_or_b32 s20, s20, s21")
    e(f"    v_mov_b32 v4, {COFF}")
    e("    s_mov_b32 s21, 1")
    e("    v_mov_b32 v5, 0")
    e("    v_mov_b32 v8, 0")
    if ema or integ:
        e("    s_mov_b32 s33, 0")
    e("    s_mul_i32 s22, s2, 3072")
    e("    s_mov_b32 s26, 3072")
    e("    s_mov_b32 s27, 0x20000")
    e(f"    s_mov_b32 m0, {QOFF}")
    e("    s_waitcnt lgkmcnt(0)")
    e("    s_add_u32 s24, s4, s22")
    e("    s_addc_u32 s25, s5, 0")
    if qpos:
        if sdiag: ts(3)
        e("    s_barrier")
    for k in range(3):
        e(f"    buffer_load_dwordx4 v9, s[24:27], 0 offen offset:{k*1024} nt lds   ; q -> LDS")
    if qpos:
        e("    s_barrier")
        e("    s_barrier")
        e("    s_mov_b32 s21, 4")
    e("    s_waitcnt vmcnt(0)")
    def cbody(vr):
        e("    s_barrier")
        e("    s_waitcnt vmcnt(2)")
        e(f"    s_sub_u32 s22, s21, {2 + rng}")
        e("    v_mov_b32 v3, s21")
        e(f"    v_subrev_u32 v6, s22, v{vr}")
        e(f"    v_cmp_ne_u32 s[30:31], 0, v{vr}")
        e(f"    v_cmp_gt_u32 vcc, {2*rng}, v6")
        e(f"    v_subrev_u32 v6, {rng}, v6")
        e("    buffer_store_byte v3, v1, s[16:19], s20 offen")
        e("    s_and_b64 vcc, vcc, s[30:31]")
        e(f"    buffer_load_ubyte v{vr}, v0, s[16:19], 0 offen sc1")
        e("    v_cndmask_b32 v6, 0, v6, vcc")
        for ctrl in ("row_shr:1", "row_shr:2", "row_shr:4", "row_shr:8"):
            e("    s_nop 1")
            e(f"    v_add_u32_dpp v6, v6, v6 {ctrl} row_mask:0xf bank_mask:0xf bound_ctrl:1")
        e("    s_add_u32 s21, s21, 1")
        e("    v_readlane_b32 s22, v6, 15")
        e("    v_readlane_b32 s23, v6, 31")
        e("    v_readlane_b32 s28, v6, 47")
        e("    v_readlane_b32 s29, v6, 63")
        e("    s_add_i32 s22, s22, s23")
        e("    s_add_i32 s28, s28, s29")
        e("    s_add_i32 s22, s22, s28")
        e(f"    s_add_i32 s22, s22, {cb}")
        if ema:
            e(f"    s_ashr_i32 s23, s33, {ema}")
            e(f"    s_sub_i32 s33, s33, s23")
            e(f"    s_add_i32 s33, s33, s22")
            e(f"    s_ashr_i32 s22, s33, {sh+ema}")
        elif integ:
            e(f"    s_add_i32 s22, s22, s33")
            e(f"    s_and_b32 s33, s22, {(1<<sh)-1}")
            e(f"    s_ashr_i32 s22, s22, {sh}")
        else:
            e(f"    s_ashr_i32 s22, s22, {sh}")
        e(f"    s_add_i32 s22, s22, {W}")
        e(f"    s_max_i32 s22, s22, {wmin}")
        e(f"    s_min_i32 s22, s22, {wmax}")
        e(f"    s_cmp_lt_u32 s21, {8 if qpos else 5}")
        e(f"    s_cselect_b32 s22, {W}, s22")
        e("    v_mov_b32 v7, s22")
        e("    ds_write_b32 v4, v7")
    if sdiag and not qpos:
        ts(3)
    e("L_cgrp:")
    cbody(5)
    cbody(8)
    e(f"    s_cmp_lt_u32 s21, {96-nend-1}")
    e("    s_cbranch_scc1 L_cgrp")
    e("    s_branch L_fin" if sdiag else "    s_endpgm")
    sC, sP, sP0, sEo, sEn, sFl, sSeq, sB, sT2 = 33, 34, 37, 38, 39, 40, 42, 45, 46
    sSC, sL2E, sMSK, sER, sEs = 47, 48, 49, 51, 52
    vA = [4, 5, 6, 7]; vB = [8, 9, 10, 11]; vE0, vE, vL16, vQo, vSR = 12, 13, 14, 15, 3
    vP, vQD, ACC, TT, EE = 16, 20, 28, 44, 60
    NV = nvg
    align()
    e("; ---------------- consumers")
    e("L_cons:")
    if fast0:
        e("    s_load_dwordx4 s[12:15], s[0:1], 32        ; f out")
        if stamp:
            e(f"    s_load_dwordx2 s[60:61], s[0:1], 56")
    e(f"    s_cmp_eq_u32 s{sW}, 256")
    e(f"    s_cbranch_scc1 L_ctl")
    if xw:
        e(f"    s_cmp_gt_u32 s{sW}, 256")
        e(f"    s_cbranch_scc1 L_end")
    e(f"    s_lshr_b32 s{sC}, s{sW}, 6")
    e(f"    s_sub_u32 s{sC}, s{sC}, 1")
    e("    v_and_b32 v0, 63, v0")
    e(f"    v_lshlrev_b32 v{vL16}, 4, v0")
    def eload0():
        e(f"    s_mov_b32 s{sE+2}, 65536")
        e(f"    s_mov_b32 s{sE+3}, 0x20000")
        e(f"    s_mul_i32 s{sT}, s{sC}, 1040")
        e(f"    s_add_u32 s{sT}, s{sT}, {EOFF}")
        e(f"    s_lshl_b32 s{sT2}, s{sC}, 12")
        e("    s_waitcnt lgkmcnt(0)")
        ts(1)
        e(f"    s_mov_b32 s{sE}, s10")
        e(f"    s_mov_b32 s{sE+1}, s11")
        for k in range(6):
            if k == 5:
                e(f"    s_cmp_lg_u32 s{sC}, 0")
                e(f"    s_cbranch_scc1 L_e0done")
            e(f"    s_add_u32 m0, s{sT}, {3*k*1040}")
            e(f"    s_add_u32 s{sB}, s{sT2}, {3*k*4096}")
            if not diag & 8:
                e(f"    buffer_load_dwordx4 v{vL16}, s[{sE}:{sE+3}], s{sB} offen lds")
        e("L_e0done:")
        if diag & 4:
            ts(2); ts(3); ts(4)
            e("    s_branch L_fin")
    if not elate: eload0()
    e("    v_and_b32 v1, 15, v0")
    e("    v_lshrrev_b32 v2, 4, v0                    ; g")
    e(f"    v_mul_u32_u24 v{vQo}, 0x180, v1")
    e(f"    s_lshl_b32 s{sT}, s{sC}, 7")
    e(f"    v_lshl_add_u32 v{vQo}, v2, 3, v{vQo}")
    e(f"    v_add_u32 v{vQo}, s{sT}, v{vQo}")
    e(f"    v_mul_u32_u24 v{vE0}, 0x410, v1")
    e(f"    v_lshl_add_u32 v{vE0}, v2, 3, v{vE0}")
    e(f"    v_lshrrev_b32 v{vA[1]}, 2, v0")
    e(f"    v_mul_u32_u24 v{vA[1]}, 3, v{vA[1]}")
    e(f"    v_add_u32 v{vA[1]}, s{sC}, v{vA[1]}")
    e(f"    v_bfe_u32 v{vA[2]}, v{vA[1]}, 1, 2")
    e(f"    v_lshlrev_b32 v{vA[2]}, 5, v{vA[2]}")
    e(f"    v_lshl_add_u32 v{vA[2]}, v{vA[1]}, 7, v{vA[2]}")
    e(f"    v_and_b32 v{vA[3]}, 3, v0")
    e(f"    v_lshl_add_u32 v{vA[0]}, v{vA[3]}, 3, v{vA[2]}")
    for t in range(1, 4):
        e(f"    v_xor_b32 v{vA[t]}, {32*t}, v{vA[0]}")
    e(f"    v_add_u32 v{vSR}, {SOFF}, v{vL16}")
    e(f"    v_lshlrev_b32 v2, 2, v2")
    e(f"    v_sub_u32 v2, v1, v2")
    e(f"    v_mov_b32 v{TT}, 0x3f80")
    e(f"    v_mov_b32 v{TT+1}, 0x3f800000")
    e(f"    v_mov_b32 v{vP}, 0")
    e(f"    v_mov_b32 v{vP+1}, 0")
    for k in range(4):
        e(f"    v_cmp_eq_u32 vcc, {k}, v2")
        e(f"    s_nop 1")
        e(f"    v_cndmask_b32 v{vP+(k>>1)}, v{vP+(k>>1)}, v{TT+(k&1)}, vcc")
    e(f"    s_mov_b32 s{sSC}, 0x3d93cd3a                ; 192^-0.5")
    e(f"    s_mov_b32 s{sL2E}, 0x3fb8aa3b                ; log2(e)")
    e(f"    s_mov_b32 s{sMSK}, 0xffff0000")
    if erot:
        e(f"    s_lshr_b32 s54, s2, {3 if erot == 1 else 0}")
    e(f"    s_mov_b32 s{sP}, 0")
    e(f"    s_mov_b32 s{sP0}, 0")
    e(f"    s_mov_b32 s{sEo}, {EOFF}")
    e(f"    s_mov_b32 s{sEn}, {EOFF+ES}")
    for r in range(16):
        e(f"    v_mov_b32 v{ACC+r}, 0")
    if elate: eload0()
    e("    s_mul_i32 s32, s2, 3072")
    e(f"    s_add_u32 s{sO}, s14, s32")
    e(f"    s_addc_u32 s{sO+1}, s15, 0")
    e(f"    s_mov_b32 s{sO+2}, 0")
    e(f"    s_mov_b32 s{sO+3}, 0x20000")
    e("L_period:")
    e(f"    s_mov_b32 s{sSeq}, {SEQ & 0xffffffff:#x}")
    e(f"    s_mov_b32 s{sSeq+1}, {SEQ >> 32:#x}")
    e(f"    s_mov_b32 s{sFl}, {FL:#x}")
    e(f"    s_mov_b32 s{sER}, s{sC}")
    if esm:
        e(f"    s_mov_b32 s53, -1")
    e(f"    s_add_u32 s{sEs}, s{sP}, 1")
    e(f"    s_and_b32 s{sEs}, s{sEs}, 3")
    e(f"    s_cbranch_scc1 L_nosw")
    e(f"    s_mov_b32 s{sE}, s12")
    e(f"    s_mov_b32 s{sE+1}, s13")
    e("L_nosw:")
    e(f"    s_lshl_b32 s{sEs}, s{sEs}, 10")
    e(f"    s_cmp_eq_u32 s{sP}, 7")
    e(f"    s_cselect_b32 s{sER}, 16, s{sER}")
    e(f"    s_cselect_b32 s{sFl}, {FL_LAST:#x}, s{sFl}")
    if sdiag:
        e(f"    s_cmp_lg_u32 s{sP}, 0")
        e(f"    s_cbranch_scc1 L_nots3a")
        ts(3)
        e("L_nots3a:")
    e("    s_barrier")
    if stamp:
        e(f"    s_cmp_lg_u32 s{sP}, 0")
        e(f"    s_cbranch_scc1 L_nots2")
        ts(2)
        e("L_nots2:")
    e(f"    s_cmp_eq_u32 s{sP}, 4")
    e(f"    s_cbranch_scc1 L_softmax")
    e(f"    s_cmp_eq_u32 s{sP}, 3")
    e(f"    s_cbranch_scc1 L_qread")
    e("L_q0done:")
    e("    s_waitcnt vmcnt(0)")
    if sdiag:
        e(f"    s_cmp_lg_u32 s{sP}, 0")
        e(f"    s_cbranch_scc1 L_nots4a")
        ts(4)
        e("L_nots4a:")
    e("L_block:")
    e(f"    s_and_b32 s{sB}, s{sSeq}, 15")
    e(f"    s_lshr_b64 s[{sSeq}:{sSeq+1}], s[{sSeq}:{sSeq+1}], 4")
    e(f"    s_lshl_b32 s{sT2}, s{sB}, 6")
    e(f"    s_add_u32 s{sT2}, s{sT2}, s{sEo}")
    e(f"    s_mul_i32 s{sB}, s{sB}, 12288")
    e(f"    v_add_u32 v{vE}, s{sT2}, v{vE0}")
    e(f"    s_add_u32 s{sB}, s{sB}, s{sP0}")
    for _ in range(2):
        e(f"    s_sub_u32 s{sT}, s{sB}, {RB}")
        e(f"    s_cselect_b32 s{sB}, s{sB}, s{sT}")
    for t in range(4):
        e(f"    v_add_u32 v{vB[t]}, s{sB}, v{vA[t]}")
    e(f"    s_bitcmp0_b32 s{sFl}, 0")
    e(f"    s_cbranch_scc1 L_nobarc")
    e("    s_barrier")
    e("L_nobarc:")
    e(f"    ds_read_b64 v[{EE}:{EE+1}], v{vE}")
    e(f"    ds_read_b64 v[{EE+2}:{EE+3}], v{vE} offset:32")
    for t in range(0 if diag & 2 else 4):
        e(f"    ds_read_b64_tr_b16 v[{TT+4*t}:{TT+4*t+1}], v{vB[t]}")
        e(f"    ds_read_b64_tr_b16 v[{TT+4*t+2}:{TT+4*t+3}], v{vB[t]} offset:6144")
    if esm:
        e(f"    s_add_u32 s53, s53, 1")
        e(f"    s_cmp_lg_u32 s{sER}, s53")
    else:
        e(f"    s_cmp_ge_u32 s{sER}, 16")
    e(f"    s_cbranch_scc1 L_noe")
    if erot:
        e(f"    s_add_u32 s{sT2}, s{sER}, s54")
        e(f"    s_and_b32 s{sT2}, s{sT2}, 15")
    rr = sT2 if erot else sER
    e(f"    s_mul_i32 s{sT}, s{rr}, 1040")
    e(f"    s_add_u32 m0, s{sT}, s{sEn}")
    e(f"    s_lshl_b32 s{sT}, s{rr}, 12")
    e(f"    s_add_u32 s{sT}, s{sT}, s{sEs}")
    e(f"    s_add_u32 s{sER}, s{sER}, 3")
    if not diag & 1:
        e(f"    buffer_load_dwordx4 v{vL16}, s[{sE}:{sE+3}], s{sT} offen lds")
    e("L_noe:")
    e(f"    s_lshr_b32 s{sFl}, s{sFl}, 1")
    e(f"    s_cmp_lg_u32 s{sFl}, 1")
    for t in range(4):
        e(f"    s_waitcnt lgkmcnt({6-2*t})")
        e(f"    v_mfma_f32_16x16x32_bf16 v[{ACC+4*t}:{ACC+4*t+3}], v[{EE}:{EE+3}], v[{TT+4*t}:{TT+4*t+3}], v[{ACC+4*t}:{ACC+4*t+3}]")
    e(f"    s_cbranch_scc1 L_block")
    e(f"    s_add_u32 s{sP}, s{sP}, 1")
    e(f"    s_and_b32 s{sT}, s{sP}, 3")
    e(f"    s_cbranch_scc1 L_nextp")
    if stamp and not sdiag:
        e(f"    s_cmp_lg_u32 s{sP}, 4")
        e(f"    s_cbranch_scc1 L_nots3")
        ts(3)
        e("L_nots3:")
    A0 = TT; D0 = ACC; R0 = TT + 8
    for k in range(8):
        e(f"    v_cvt_pk_bf16_f32 v{A0+k}, v{ACC+2*k}, v{ACC+2*k+1}")
    e(f"    s_cmp_eq_u32 s{sP}, 8")
    for t in range(4):
        e(f"    v_mfma_f32_16x16x16_bf16 v[{D0+4*t}:{D0+4*t+3}], v[{A0+2*t}:{A0+2*t+1}], v[{vP}:{vP+1}], 0")
    e("    s_nop 4")
    for t in range(4):
        e(f"    v_cvt_pk_bf16_f32 v{R0+2*t}, v{D0+4*t}, v{D0+4*t+1}")
        e(f"    v_cvt_pk_bf16_f32 v{R0+2*t+1}, v{D0+4*t+2}, v{D0+4*t+3}")
        e(f"    buffer_store_dwordx2 v[{R0+2*t}:{R0+2*t+1}], v{vQo}, s[{sO}:{sO+3}], 0 offen offset:{32*t}")
    e(f"    s_cbranch_scc1 L_fin")
    S0 = EE
    e(f"    v_mfma_f32_16x16x32_bf16 v[{S0}:{S0+3}], v[{R0}:{R0+3}], v[{vQD}:{vQD+3}], 0")
    e(f"    v_mfma_f32_16x16x32_bf16 v[{S0}:{S0+3}], v[{R0+4}:{R0+7}], v[{vQD+4}:{vQD+7}], v[{S0}:{S0+3}]")
    e(f"    s_lshl_b32 s{sT}, s{sC}, 10")
    e(f"    v_add_u32 v{vE}, s{sT}, v{vSR}")
    for r in range(16):
        e(f"    v_mov_b32 v{ACC+r}, 0")
    e(f"    ds_write_b128 v{vE}, v[{S0}:{S0+3}]")
    e(f"    s_mov_b32 s{sO+2}, 3072")
    e("    s_waitcnt lgkmcnt(0)")
    e("L_nextp:")
    e(f"    s_add_u32 s{sP0}, s{sP0}, {196608 - RB}")
    e(f"    s_sub_u32 s{sT}, s{sP0}, {RB}")
    e(f"    s_cselect_b32 s{sP0}, s{sP0}, s{sT}")
    e(f"    s_mov_b32 s{sT}, s{sEo}")
    e(f"    s_mov_b32 s{sEo}, s{sEn}")
    e(f"    s_mov_b32 s{sEn}, s{sT}")
    e(f"    s_branch L_period")
    e("L_qread:")
    e(f"    v_and_b32 v1, 7, v0")
    e(f"    v_mul_u32_u24 v1, 0x180, v1")
    e(f"    v_lshrrev_b32 v2, 4, v0")
    e(f"    v_lshl_add_u32 v1, v2, 3, v1")
    e(f"    s_lshl_b32 s{sT}, s{sC}, 7")
    e(f"    s_add_u32 s{sT}, s{sT}, {QOFF}")
    e(f"    v_add_u32 v1, s{sT}, v1")
    for t in range(4):
        e(f"    ds_read_b64 v[{vQD+2*t}:{vQD+2*t+1}], v1 offset:{32*t}")
    e("    s_waitcnt lgkmcnt(0)")
    e(f"    s_branch L_q0done")
    e("L_softmax:")
    X = TT; Y = TT + 12
    for m in range(3):
        e(f"    ds_read_b128 v[{X+4*m}:{X+4*m+3}], v{vSR} offset:{m*1024}")
    for m in range(1, 3):
        e(f"    s_waitcnt lgkmcnt({2-m})")
        for k in range(4):
            e(f"    v_add_f32 v{X+k}, v{X+k}, v{X+4*m+k}")
    def round4():
        e(f"    v_cvt_pk_bf16_f32 v{Y}, v{X}, v{X+1}")
        e(f"    v_cvt_pk_bf16_f32 v{Y+1}, v{X+2}, v{X+3}")
        e(f"    v_lshlrev_b32 v{X}, 16, v{Y}")
        e(f"    v_and_b32 v{X+1}, s{sMSK}, v{Y}")
        e(f"    v_lshlrev_b32 v{X+2}, 16, v{Y+1}")
        e(f"    v_and_b32 v{X+3}, s{sMSK}, v{Y+1}")
    round4()
    for i in range(4):
        e(f"    v_mul_f32 v{X+i}, s{sSC}, v{X+i}")
    round4()
    def allreduce(op):
        for sw in ("v_permlane16_swap_b32", "v_permlane32_swap_b32"):
            e(f"    v_mov_b32 v{Y+1}, v{Y}")
            e(f"    s_nop 1")
            e(f"    {sw} v{Y}, v{Y+1}")
            e(f"    s_nop 1")
            e(f"    {op} v{Y}, v{Y}, v{Y+1}")
    e(f"    v_max3_f32 v{Y}, v{X}, v{X+1}, v{X+2}")
    e(f"    v_max_f32 v{Y}, v{Y}, v{X+3}")
    allreduce("v_max_f32")
    for i in range(4):
        e(f"    v_sub_f32 v{X+i}, v{X+i}, v{Y}")
    for i in range(4):
        e(f"    v_mul_f32 v{X+i}, s{sL2E}, v{X+i}")
    for i in range(4):
        e(f"    v_exp_f32 v{X+i}, v{X+i}")
    e("    s_nop 0")
    e(f"    v_add_f32 v{Y}, v{X}, v{X+1}")
    e(f"    v_add_f32 v{Y+2}, v{X+2}, v{X+3}")
    e(f"    v_add_f32 v{Y}, v{Y}, v{Y+2}")
    allreduce("v_add_f32")
    e(f"    v_rcp_f32 v{Y}, v{Y}")
    e("    s_nop 0")
    for i in range(4):
        e(f"    v_mul_f32 v{X+i}, v{X+i}, v{Y}")
    e(f"    v_cvt_pk_bf16_f32 v{vP}, v{X}, v{X+1}")
    e(f"    v_cvt_pk_bf16_f32 v{vP+1}, v{X+2}, v{X+3}")
    if not sdiag: ts(4)
    e(f"    s_branch L_q0done")
    e("L_fin:")
    if stamp:
        e(f"    s_cmp_eq_u32 s{sW}, 0")
        e(f"    s_cbranch_scc1 L_fin2")
        e(f"    s_mov_b32 s{sTS+10}, s{sTS}")
        e("L_fin2:")
        e("    s_waitcnt vmcnt(0)")
        ts(6)
        e(f"    s_getreg_b32 s{sTS+14}, hwreg(HW_REG_XCC_ID)")
        e(f"    s_getreg_b32 s{sT}, hwreg(HW_REG_HW_ID)")
        e(f"    s_and_b32 s{sTS+14}, s{sTS+14}, 15")
        e(f"    s_lshl_b32 s{sT}, s{sT}, 4")
        e(f"    s_or_b32 s{sTS+14}, s{sTS+14}, s{sT}")
        e(f"    s_mov_b32 s62, 0x100000")
        e(f"    s_mov_b32 s63, 0x20000")
        e("    s_waitcnt lgkmcnt(0)")
        for k in range(8):
            e(f"    v_mov_b32 v{ACC+k}, s{sTS+2*k}")
        e(f"    s_mul_i32 s{sT}, s2, {160+32*xw}")
        e(f"    s_lshr_b32 s{sW}, s{sW}, 1")
        e(f"    s_add_u32 s{sT}, s{sT}, s{sW}")
        e(f"    v_mov_b32 v2, s{sT}")
        e(f"    buffer_store_dwordx4 v[{ACC}:{ACC+3}], v2, s[60:63], 0 offen")
        e(f"    buffer_store_dwordx4 v[{ACC+4}:{ACC+7}], v2, s[60:63], 0 offen offset:16")
    e("L_end:")
    e("    s_endpgm")
    e('.section .rodata,"a"')
    e(".p2align 6")
    e(f".amdhsa_kernel {NAME}_kernel")
    e(f"  .amdhsa_next_free_vgpr {NV}")
    e(f"  .amdhsa_next_free_sgpr {80 if stamp else 56}")
    e(f"  .amdhsa_accum_offset {(NV+3)//4*4}")
    e("  .amdhsa_group_segment_fixed_size 0")
    e("  .amdhsa_kernarg_size 64")
    e("  .amdhsa_user_sgpr_count 2")
    e("  .amdhsa_user_sgpr_kernarg_segment_ptr 1")
    e("  .amdhsa_system_sgpr_workgroup_id_x 1")
    e("  .amdhsa_float_denorm_mode_32 3")
    e(".end_amdhsa_kernel")
    return "\n".join(L) + "\n"

if __name__ == "__main__":
    ap = argparse.ArgumentParser()
    ap.add_argument("-o", default="-")
    for k, d in dict(W=19, R=120, Wend=32, nend=4, Wbeg=19, wmin=16, wmax=24, sh=3, cb=16, al=6, rng=8, ema=0, integ=0, diag=0, esm=1, erot=0, xw=0, nvg=64, fast0=0, sdiag=0, cpf=0, qpos=1, elate=1).items():
        ap.add_argument("--" + k, type=int, default=d)
    ap.add_argument("--stamp", action="store_true")
    a = vars(ap.parse_args()); o = a.pop("o")
    (sys.stdout if o == "-" else open(o, "w")).write(gen(**a))
```

```python
import sys, argparse

NAME = "standalone__low_rank_proj_linformer__sampling"
HEADER = """; Kernarg layout for this problem (64 bytes, ptrs only, base s[0:1]):
"""
DOC = """;
"""

def schedule(W, R):
    def grp(x):
        return 4 * (x // 64) + (x % 32) // 8
    done = [max(grp(x) for x in range(12 * b, 12 * b + 12)) for b in range(128)]
    slack = min(16 * grp(x + R) - (16 * (done[x // 12] + 1) + 15 + W) for x in range(1536 - R))
    assert slack >= 0, slack
    seq = sorted(range(16), key=lambda b: (done[b], b))
    first = [int(i == 0 or done[seq[i]] != done[seq[i - 1]]) for i in range(16)]
    assert sorted(set(done[:16])) == list(range(1, 12))
    return seq, first, slack

def gen(W=19, R=120, Wend=32, nend=4, Wbeg=19, wmin=16, wmax=24, sh=3, cb=16, al=6, rng=8, ema=0, integ=0, diag=0, esm=1, erot=0, xw=0, nvg=64, fast0=0, sdiag=0, cpf=0, qpos=1, elate=1, poll=0, ramp="", bpos=15, pipe=0, stamp=False):
    seq, first, slack = schedule(33 if poll else max(W, Wend, wmax), R)
    assert seq[-3:] == [12, 13, 15] and nend >= 2
    SEQ = sum(b << (4 * i) for i, b in enumerate(seq))
    FL = sum(f << i for i, f in enumerate(first)) | (1 << 16)
    FL_LAST = FL | (7 << 13)
    RB = R * 1024
    ES = 16 * 1040
    EOFF = RB
    SOFF = RB + 2 * ES
    COFF = SOFF + 3072
    QOFF = COFF + 16
    LDS = QOFF + 3072
    assert LDS <= 163840
    Ws = list(range(wmin, wmax + 1))
    L = []; e = L.append
    sTS = 64
    def ts(k):
        if stamp:
            e(f"    s_memrealtime s[{sTS+2*k}:{sTS+2*k+1}]")
    def align():
        if al: e(f".p2align {al}")
    sD, sE, sO = 16, 20, 28
    sW = 3
    e(HEADER.rstrip())
    e(f"; @launch grid=(256,1,1) block=({320+64*xw},1,1) lds={LDS}")
    e(DOC.rstrip())
    e('.amdgcn_target "amdgcn-amd-amdhsa--gfx950"')
    e(".text")
    e(f".globl {NAME}_kernel")
    e(".p2align 8")
    e(f".type {NAME}_kernel,@function")
    e(f"{NAME}_kernel:")
    sQi, sT = 35, 36
    sU = [40, 41, 42, 43]; mU = [44, 45, 46, 47]
    DU = (0, 4096, 32768, 36864)
    if fast0:
        e("    s_load_dwordx8 s[4:11], s[0:1], 0          ; q k v e")
        if stamp: ts(0)
        if cpf:
            e("    s_getpc_b64 s[20:21]")
            e("L_pc:")
            e("    s_movk_i32 s23, 0xe000")
            e("    s_mov_b32 s22, L_end - L_pc")
            e("    v_lshl_add_u32 v3, v0, 7, s23")
            e("    s_mov_b32 s23, 0x20000")
            e("    buffer_load_dword v63, v3, s[20:23], 0 offen")
        e(f"    v_readfirstlane_b32 s{sW}, v0               ; 64 * wave")
        e("    v_and_b32 v2, 48, v0")
        e("    v_lshlrev_b32 v1, 3, v0")
        e("    s_cmpk_ge_u32 s2, 0x100")
        e("    s_cbranch_scc1 L_end")
        e("    s_mul_i32 s32, s2, 786432")
        e(f"    s_cmp_lg_u32 s{sW}, 0")
        e("    s_cbranch_scc1 L_cons")
        e("; ---------------- loader")
        e("    v_xor_b32 v1, v1, v2")
        e(f"    s_mov_b32 s{sD+2}, 786432")
        e("    v_lshlrev_b32 v1, 1, v1")
        e(f"    s_mov_b32 s{sD+3}, 0x20000")
        e(f"    s_movk_i32 s{sU[1]}, 0x1000")
        e(f"    s_lshl_b32 s{sU[2]}, s{sU[1]}, 3")
        e(f"    s_mov_b32 m0, 0")
        e("    s_waitcnt lgkmcnt(0)")
        ts(1)
        e(f"    s_add_u32 s{sD}, s6, s32")
        e(f"    s_addc_u32 s{sD+1}, s7, 0")
        e("L_first:                                       ; group 0: ring offset = memory offset, one register serves both")
        for k, x in enumerate((sU[1], sU[2], sU[1], sU[2])):
            e(f"    buffer_load_dwordx4 v1, s[{sD}:{sD+3}], m0 offen nt lds")
            e(f"    s_xor_b32 m0, m0, s{x}")
            if k < 3: e("    s_nop 0")
        e("    s_addk_i32 m0, 0x400")
        e(f"    s_cmp_lg_u32 m0, s{sU[1]}")
        e("    s_cbranch_scc1 L_first")
        ts(2)
        if stamp:
            e(f"    s_load_dwordx2 s[60:61], s[0:1], 56")
        e(f"    s_mov_b32 s{sQi}, 1")
        for u in range(4):
            e(f"    s_mov_b32 s{sU[u]}, {DU[u]+8192}")
            e(f"    s_mov_b32 s{mU[u]}, s{sU[u]}")
        e(f"    v_mov_b32 v2, {COFF}")
        e(f"    v_mov_b32 v3, {W}")
    else:
        e("    s_load_dwordx8 s[4:11], s[0:1], 0          ; q k v e")
        e("    s_load_dwordx4 s[12:15], s[0:1], 32        ; f out")
        if stamp:
            e(f"    s_load_dwordx2 s[60:61], s[0:1], 56")
            ts(0)
        e("    s_cmp_ge_u32 s2, 256")
        e("    s_cbranch_scc1 L_end")
        e(f"    v_readfirstlane_b32 s{sW}, v0               ; 64 * wave")
        e("    v_lshrrev_b32 v2, 4, v0")
        e("    v_lshlrev_b32 v1, 4, v0")
        e("    v_lshlrev_b32 v2, 5, v2")
        e("    s_mul_i32 s32, s2, 786432")
        e(f"    s_cmp_lg_u32 s{sW}, 0")
        e("    s_cbranch_scc1 L_cons")
        sQi, sT = 35, 36
        sU = [40, 41, 42, 43]; mU = [44, 45, 46, 47]
        DU = (0, 4096, 32768, 36864)
        e("; ---------------- loader")
        e("    v_xor_b32 v1, v1, v2")
        e(f"    s_mov_b32 s{sD+2}, 786432")
        e(f"    s_mov_b32 s{sD+3}, 0x20000")
        e(f"    s_mov_b32 s{sQi}, 0")
        for u in range(4):
            e(f"    s_mov_b32 s{sU[u]}, {DU[u]}")
            e(f"    s_mov_b32 s{mU[u]}, s{sU[u]}")
        e(f"    v_mov_b32 v2, {COFF}")
        e(f"    v_mov_b32 v3, {W}")
        e("    s_waitcnt lgkmcnt(0)")
        ts(1)
        e(f"    s_add_u32 s{sD}, s6, s32")
        e(f"    s_addc_u32 s{sD+1}, s7, 0")
    def load(u, i, Wx, bar=False):
        e(f"    s_mov_b32 m0, s{mU[u]}")
        e(f"    s_waitcnt vmcnt({Wx-1})")
        if bar:
            e("    s_barrier")
        e(f"    buffer_load_dwordx4 v1, s[{sD}:{sD+3}], s{sU[u]} offen offset:{i*1024} nt lds")
    def body(Wx, bar=True, rd=True, init=False):
        bp = max(Wx - 17, 0)
        for pos in range(16):
            load(pos & 3, pos >> 2, Wx, bar and pos == bp)
            if pos == 4 and init:
                e(f"    ds_write_b32 v2, v3")
            if pos == 8 and rd:
                e(f"    ds_read_b32 v3, v2")
            if pos == 10:
                e(f"    s_add_u32 s{sQi}, s{sQi}, 1")
                e(f"    s_and_b32 s{sT}, s{sQi}, 3")
                e(f"    s_cselect_b32 s{sT}, 8, 40")
                e(f"    s_lshl_b32 s{sT}, s{sT}, 10")
            if pos == 11 and rd:
                e(f"    s_waitcnt lgkmcnt(0)")
                e(f"    v_readfirstlane_b32 s48, v3")
            if pos >= 12:
                u = pos - 12
                e(f"    s_add_u32 s{sU[u]}, s{sU[u]}, s{sT}")
                e(f"    s_add_u32 s{mU[u]}, s{mU[u]}, s{sT}")
                e(f"    s_sub_u32 s37, s{mU[u]}, {RB}")
                e(f"    s_cselect_b32 s{mU[u]}, s{mU[u]}, s37")
    def tree(vals):
        if len(vals) == 1:
            e(f"    s_branch L_body{vals[0]}")
            return
        if len(vals) == 2:
            e(f"    s_cmp_eq_u32 s48, {vals[0]}")
            e(f"    s_cbranch_scc1 L_body{vals[0]}")
            tree(vals[1:])
            return
        h = len(vals) // 2
        lab = f"L_tree{vals[h]}_{len(vals)}"
        e(f"    s_cmp_ge_u32 s48, {vals[h]}")
        e(f"    s_cbranch_scc1 {lab}")
        tree(vals[:h])
        e(f"{lab}:")
        tree(vals[h:])
    def enc(w):
        return ((w >> 4) << 30) | (w & 15)
    if poll:
        assert fast0
        sI, sTh, sMk, sX = 49, 48, 50, 51
        e(f"    s_mov_b32 s{sMk}, 0x00c0000f")
        e(f"    s_mov_b32 s{sTh}, {enc(Wbeg):#x}")
        e(f"    v_mov_b32 v3, {enc(W):#x}")
        e(f"    v_mov_b32 v4, v1")
        e(f"    ds_write_b32 v2, v3")
        e("L_lgrp:")
        e(f"    s_mov_b32 s{sI}, 0")
        e(f"    v_mov_b32 v1, v4")
        e("L_lquad:")
        for u in range(4):
            e(f"    s_add_u32 m0, s{mU[u]}, s{sI}")
            e(f"L_poll{u}:                                       ; wait until fewer than W loads are in flight")
            e(f"    s_getreg_b32 s{sX}, hwreg(HW_REG_IB_STS)")
            e(f"    s_and_b32 s{sX}, s{sX}, s{sMk}")
            e(f"    s_cmp_ge_u32 s{sX}, s{sTh}")
            e(f"    s_cbranch_scc1 L_poll{u}")
            e(f"    buffer_load_dwordx4 v1, s[{sD}:{sD+3}], s{sU[u]} offen nt lds")
        e(f"    v_add_u32 v1, 0x400, v1")
        e(f"    s_addk_i32 s{sI}, 0x400")
        e(f"    s_cmpk_lg_u32 s{sI}, {((bpos + 1) // 4) * 0x400:#x}")
        e(f"    s_cbranch_scc1 L_lnobar")
        e(f"    ds_read_b32 v3, v2")
        e(f"    s_cmp_lt_u32 s{sQi}, 2")
        e(f"    s_cbranch_scc1 L_lnobar")
        e(f"    s_waitcnt vmcnt({16 + ((bpos + 1) // 4) * 4})")
        e("    s_barrier")
        e("L_lnobar:")
        e(f"    s_cmpk_lg_u32 s{sI}, 0x1000")
        e(f"    s_cbranch_scc1 L_lquad")
        e(f"    s_add_u32 s{sQi}, s{sQi}, 1")
        e(f"    s_and_b32 s{sT}, s{sQi}, 3")
        e(f"    s_cselect_b32 s{sT}, 8, 40")
        e(f"    s_lshl_b32 s{sT}, s{sT}, 10")
        e(f"    s_waitcnt lgkmcnt(0)")
        e(f"    v_readfirstlane_b32 s{sTh}, v3")
        for u in range(4):
            e(f"    s_add_u32 s{sU[u]}, s{sU[u]}, s{sT}")
            e(f"    s_add_u32 s{mU[u]}, s{mU[u]}, s{sT}")
            e(f"    s_sub_u32 s37, s{mU[u]}, {RB}")
            e(f"    s_cselect_b32 s{mU[u]}, s{mU[u]}, s37")
        e(f"    s_cmp_lg_u32 s{sQi}, 48")
        e(f"    s_cbranch_scc1 L_lnosw")
        e(f"    s_add_u32 s{sD}, s8, s32")
        e(f"    s_addc_u32 s{sD+1}, s9, 0")
        for u in range(4):
            e(f"    s_mov_b32 s{sU[u]}, {DU[u]}")
        e("L_lnosw:")
        e(f"    s_cmp_lt_u32 s{sQi}, 95")
        e(f"    s_cbranch_scc1 L_lgrp")
        e(f"    v_mov_b32 v1, v4")
    else:
        e("L_lbeg:                                        ; groups 0 and 1: nothing to publish yet")
        body(Wbeg, bar=False, rd=False, init=True)
        if stamp and not fast0:
            e(f"    s_cmp_lg_u32 s{sQi}, 1")
            e(f"    s_cbranch_scc1 L_nots2l")
            ts(2)
            e("L_nots2l:")
        e(f"    s_cmp_lt_u32 s{sQi}, 2")
        e(f"    s_cbranch_scc1 L_lbeg")
        if sdiag: ts(3)
        e(f"    s_waitcnt lgkmcnt(0)")
        e(f"L_body{W}:")
        body(W)
        e("L_ltrail:")
        e(f"    s_cmp_lg_u32 s{sQi}, 48")
        e(f"    s_cbranch_scc1 L_lnosw")
        e(f"    s_add_u32 s{sD}, s8, s32")
        e(f"    s_addc_u32 s{sD+1}, s9, 0")
        for u in range(4):
            e(f"    s_mov_b32 s{sU[u]}, {DU[u]}")
        e("L_lnosw:")
        e(f"    s_cmp_ge_u32 s{sQi}, {96-nend}")
        e(f"    s_cbranch_scc1 L_lend")
        tree(Ws)
        e("L_lend:                                        ; last groups: widest window")
        body(Wend, rd=False)
        e(f"    s_cmp_lt_u32 s{sQi}, 95")
        e(f"    s_cbranch_scc1 L_lend")
    order = [(0, i) for i in range(4)] + [(1, i) for i in range(4)] + [(u, i) for i in range(4) for u in (2, 3)]
    for pos, (u, i) in enumerate(order):
        load(u, i, Wend, pos == max(Wend - 17, 0))
    for n in (16, 12, 8):
        e(f"    s_waitcnt vmcnt({n})")
        e("    s_barrier")
    e("    s_waitcnt vmcnt(0)")
    ts(5)
    e("    s_barrier")
    if stamp:
        for k in ((4,) if sdiag else (3, 4)):
            e(f"    s_mov_b32 s{sTS+2*k}, s{sTS}")
        e("    s_branch L_fin")
    else:
        e("    s_endpgm")
    for Wx in ([] if poll else Ws):
        if Wx != W:
            align()
            e(f"L_body{Wx}:")
            body(Wx)
            e("    s_branch L_ltrail")
    align()
    e("; ---------------- balancer")
    e("L_ctl:")
    e("    s_load_dwordx2 s[16:17], s[0:1], 48        ; d_debug")
    e("    s_mov_b32 s18, 256")
    e("    s_mov_b32 s19, 0x20000")
    e("    v_and_b32 v0, 63, v0")
    e("    v_lshlrev_b32 v1, 12, v0")
    e("    s_getreg_b32 s20, hwreg(HW_REG_HW_ID, 8, 7)")
    e("    v_lshlrev_b32 v9, 4, v0")
    e("    s_lshr_b32 s21, s20, 5")
    e("    s_and_b32 s20, s20, 15")
    e("    s_lshl_b32 s21, s21, 4")
    e("    s_or_b32 s20, s20, s21")
    e(f"    v_mov_b32 v4, {COFF}")
    e("    s_mov_b32 s21, 1")
    e("    v_mov_b32 v5, 0")
    e("    v_mov_b32 v8, 0")
    if ema or integ:
        e("    s_mov_b32 s33, 0")
    e("    s_mul_i32 s22, s2, 3072")
    e("    s_mov_b32 s26, 3072")
    e("    s_mov_b32 s27, 0x20000")
    e(f"    s_mov_b32 m0, {QOFF}")
    e("    s_waitcnt lgkmcnt(0)")
    e("    s_add_u32 s24, s4, s22")
    e("    s_addc_u32 s25, s5, 0")
    if qpos:
        if sdiag: ts(3)
        e("    s_barrier")
    for k in range(3):
        e(f"    buffer_load_dwordx4 v9, s[24:27], 0 offen offset:{k*1024} nt lds   ; q -> LDS")
    if qpos:
        e("    s_barrier")
        e("    s_barrier")
        e("    s_mov_b32 s21, 4")
    e("    s_waitcnt vmcnt(0)")
    def cbody(vr):
        e("    s_barrier")
        e("    s_waitcnt vmcnt(2)")
        e(f"    s_sub_u32 s22, s21, {2 + rng}")
        e("    v_mov_b32 v3, s21")
        e(f"    v_subrev_u32 v6, s22, v{vr}")
        e(f"    v_cmp_ne_u32 s[30:31], 0, v{vr}")
        e(f"    v_cmp_gt_u32 vcc, {2*rng}, v6")
        e(f"    v_subrev_u32 v6, {rng}, v6")
        e("    buffer_store_byte v3, v1, s[16:19], s20 offen")
        e("    s_and_b64 vcc, vcc, s[30:31]")
        e(f"    buffer_load_ubyte v{vr}, v0, s[16:19], 0 offen sc1")
        e("    v_cndmask_b32 v6, 0, v6, vcc")
        for ctrl in ("row_shr:1", "row_shr:2", "row_shr:4", "row_shr:8"):
            e("    s_nop 1")
            e(f"    v_add_u32_dpp v6, v6, v6 {ctrl} row_mask:0xf bank_mask:0xf bound_ctrl:1")
        e("    s_add_u32 s21, s21, 1")
        e("    v_readlane_b32 s22, v6, 15")
        e("    v_readlane_b32 s23, v6, 31")
        e("    v_readlane_b32 s28, v6, 47")
        e("    v_readlane_b32 s29, v6, 63")
        e("    s_add_i32 s22, s22, s23")
        e("    s_add_i32 s28, s28, s29")
        e("    s_add_i32 s22, s22, s28")
        e(f"    s_add_i32 s22, s22, {cb}")
        if ema:
            e(f"    s_ashr_i32 s23, s33, {ema}")
            e(f"    s_sub_i32 s33, s33, s23")
            e(f"    s_add_i32 s33, s33, s22")
            e(f"    s_ashr_i32 s22, s33, {sh+ema}")
        elif integ:
            e(f"    s_add_i32 s22, s22, s33")
            e(f"    s_and_b32 s33, s22, {(1<<sh)-1}")
            e(f"    s_ashr_i32 s22, s22, {sh}")
        else:
            e(f"    s_ashr_i32 s22, s22, {sh}")
        e(f"    s_add_i32 s22, s22, {W}")
        e(f"    s_max_i32 s22, s22, {wmin}")
        e(f"    s_min_i32 s22, s22, {wmax}")
        e(f"    s_cmp_lt_u32 s21, {8 if qpos else 5}")
        e(f"    s_cselect_b32 s22, {W}, s22")
        if poll:
            for item in ramp.split(","):
                if item:
                    q0, add = item.split(":")
                    e(f"    s_cmp_ge_u32 s21, {q0}")
                    e(f"    s_cselect_b32 s23, {add}, 0")
                    e(f"    s_add_i32 s22, s22, s23")
            e(f"    s_min_i32 s22, s22, 32")
            e(f"    s_and_b32 s23, s22, 15")
            e(f"    s_lshr_b32 s22, s22, 4")
            e(f"    s_lshl_b32 s22, s22, 22")
            e(f"    s_or_b32 s22, s22, s23")
        e("    v_mov_b32 v7, s22")
        e("    ds_write_b32 v4, v7")
    if sdiag and not qpos:
        ts(3)
    e("L_cgrp:")
    cbody(5)
    cbody(8)
    e(f"    s_cmp_lt_u32 s21, {92 if poll else 96-nend-1}")
    e("    s_cbranch_scc1 L_cgrp")
    e("    s_branch L_fin" if sdiag else "    s_endpgm")
    sC, sP, sP0, sEo, sEn, sFl, sSeq, sB, sT2 = 33, 34, 37, 38, 39, 40, 42, 45, 46
    sSC, sL2E, sMSK, sER, sEs = 47, 48, 49, 51, 52
    vA = [4, 5, 6, 7]; vB = [8, 9, 10, 11]; vE0, vE, vL16, vQo, vSR = 12, 13, 14, 15, 3
    vP, vQD, ACC, TT, EE = 16, 20, 28, 44, 60
    NV = nvg
    align()
    e("; ---------------- consumers")
    e("L_cons:")
    if fast0:
        e("    s_load_dwordx4 s[12:15], s[0:1], 32        ; f out")
        if stamp:
            e(f"    s_load_dwordx2 s[60:61], s[0:1], 56")
    e(f"    s_cmp_eq_u32 s{sW}, 256")
    e(f"    s_cbranch_scc1 L_ctl")
    if xw:
        e(f"    s_cmp_gt_u32 s{sW}, 256")
        e(f"    s_cbranch_scc1 L_end")
    e(f"    s_lshr_b32 s{sC}, s{sW}, 6")
    e(f"    s_sub_u32 s{sC}, s{sC}, 1")
    e("    v_and_b32 v0, 63, v0")
    e(f"    v_lshlrev_b32 v{vL16}, 4, v0")
    def eload0():
        e(f"    s_mov_b32 s{sE+2}, 65536")
        e(f"    s_mov_b32 s{sE+3}, 0x20000")
        e(f"    s_mul_i32 s{sT}, s{sC}, 1040")
        e(f"    s_add_u32 s{sT}, s{sT}, {EOFF}")
        e(f"    s_lshl_b32 s{sT2}, s{sC}, 12")
        e("    s_waitcnt lgkmcnt(0)")
        ts(1)
        e(f"    s_mov_b32 s{sE}, s10")
        e(f"    s_mov_b32 s{sE+1}, s11")
        for k in range(6):
            if k == 5:
                e(f"    s_cmp_lg_u32 s{sC}, 0")
                e(f"    s_cbranch_scc1 L_e0done")
            e(f"    s_add_u32 m0, s{sT}, {3*k*1040}")
            e(f"    s_add_u32 s{sB}, s{sT2}, {3*k*4096}")
            if not diag & 8:
                e(f"    buffer_load_dwordx4 v{vL16}, s[{sE}:{sE+3}], s{sB} offen lds")
        e("L_e0done:")
        if diag & 4:
            ts(2); ts(3); ts(4)
            e("    s_branch L_fin")
    if not elate: eload0()
    e("    v_and_b32 v1, 15, v0")
    e("    v_lshrrev_b32 v2, 4, v0                    ; g")
    e(f"    v_mul_u32_u24 v{vQo}, 0x180, v1")
    e(f"    s_lshl_b32 s{sT}, s{sC}, 7")
    e(f"    v_lshl_add_u32 v{vQo}, v2, 3, v{vQo}")
    e(f"    v_add_u32 v{vQo}, s{sT}, v{vQo}")
    e(f"    v_mul_u32_u24 v{vE0}, 0x410, v1")
    e(f"    v_lshl_add_u32 v{vE0}, v2, 3, v{vE0}")
    e(f"    v_lshrrev_b32 v{vA[1]}, 2, v0")
    e(f"    v_mul_u32_u24 v{vA[1]}, 3, v{vA[1]}")
    e(f"    v_add_u32 v{vA[1]}, s{sC}, v{vA[1]}")
    e(f"    v_bfe_u32 v{vA[2]}, v{vA[1]}, 1, 2")
    e(f"    v_lshlrev_b32 v{vA[2]}, 5, v{vA[2]}")
    e(f"    v_lshl_add_u32 v{vA[2]}, v{vA[1]}, 7, v{vA[2]}")
    e(f"    v_and_b32 v{vA[3]}, 3, v0")
    e(f"    v_lshl_add_u32 v{vA[0]}, v{vA[3]}, 3, v{vA[2]}")
    for t in range(1, 4):
        e(f"    v_xor_b32 v{vA[t]}, {32*t}, v{vA[0]}")
    e(f"    v_add_u32 v{vSR}, {SOFF}, v{vL16}")
    e(f"    v_lshlrev_b32 v2, 2, v2")
    e(f"    v_sub_u32 v2, v1, v2")
    e(f"    v_mov_b32 v{TT}, 0x3f80")
    e(f"    v_mov_b32 v{TT+1}, 0x3f800000")
    e(f"    v_mov_b32 v{vP}, 0")
    e(f"    v_mov_b32 v{vP+1}, 0")
    for k in range(4):
        e(f"    v_cmp_eq_u32 vcc, {k}, v2")
        e(f"    s_nop 1")
        e(f"    v_cndmask_b32 v{vP+(k>>1)}, v{vP+(k>>1)}, v{TT+(k&1)}, vcc")
    e(f"    s_mov_b32 s{sSC}, 0x3d93cd3a                ; 192^-0.5")
    e(f"    s_mov_b32 s{sL2E}, 0x3fb8aa3b                ; log2(e)")
    e(f"    s_mov_b32 s{sMSK}, 0xffff0000")
    if erot:
        e(f"    s_lshr_b32 s54, s2, {3 if erot == 1 else 0}")
    e(f"    s_mov_b32 s{sP}, 0")
    e(f"    s_mov_b32 s{sP0}, 0")
    e(f"    s_mov_b32 s{sEo}, {EOFF}")
    e(f"    s_mov_b32 s{sEn}, {EOFF+ES}")
    for r in range(16):
        e(f"    v_mov_b32 v{ACC+r}, 0")
    if elate: eload0()
    e("    s_mul_i32 s32, s2, 3072")
    e(f"    s_add_u32 s{sO}, s14, s32")
    e(f"    s_addc_u32 s{sO+1}, s15, 0")
    e(f"    s_mov_b32 s{sO+2}, 0")
    e(f"    s_mov_b32 s{sO+3}, 0x20000")
    e("L_period:")
    e(f"    s_mov_b32 s{sSeq}, {SEQ & 0xffffffff:#x}")
    e(f"    s_mov_b32 s{sSeq+1}, {SEQ >> 32:#x}")
    e(f"    s_mov_b32 s{sFl}, {FL:#x}")
    e(f"    s_mov_b32 s{sER}, s{sC}")
    if esm:
        e(f"    s_mov_b32 s53, -1")
    e(f"    s_add_u32 s{sEs}, s{sP}, 1")
    e(f"    s_and_b32 s{sEs}, s{sEs}, 3")
    e(f"    s_cbranch_scc1 L_nosw")
    e(f"    s_mov_b32 s{sE}, s12")
    e(f"    s_mov_b32 s{sE+1}, s13")
    e("L_nosw:")
    e(f"    s_lshl_b32 s{sEs}, s{sEs}, 10")
    e(f"    s_cmp_eq_u32 s{sP}, 7")
    e(f"    s_cselect_b32 s{sER}, 16, s{sER}")
    e(f"    s_cselect_b32 s{sFl}, {FL_LAST:#x}, s{sFl}")
    if sdiag:
        e(f"    s_cmp_lg_u32 s{sP}, 0")
        e(f"    s_cbranch_scc1 L_nots3a")
        ts(3)
        e("L_nots3a:")
    e("    s_barrier")
    if stamp:
        e(f"    s_cmp_lg_u32 s{sP}, 0")
        e(f"    s_cbranch_scc1 L_nots2")
        ts(2)
        e("L_nots2:")
    e(f"    s_cmp_eq_u32 s{sP}, 4")
    e(f"    s_cbranch_scc1 L_softmax")
    e(f"    s_cmp_eq_u32 s{sP}, 3")
    e(f"    s_cbranch_scc1 L_qread")
    e("L_q0done:")
    e("    s_waitcnt vmcnt(0)")
    if sdiag:
        e(f"    s_cmp_lg_u32 s{sP}, 0")
        e(f"    s_cbranch_scc1 L_nots4a")
        ts(4)
        e("L_nots4a:")
    def calc():
        e(f"    s_and_b32 s{sB}, s{sSeq}, 15")
        e(f"    s_lshr_b64 s[{sSeq}:{sSeq+1}], s[{sSeq}:{sSeq+1}], 4")
        e(f"    s_lshl_b32 s{sT2}, s{sB}, 6")
        e(f"    s_add_u32 s{sT2}, s{sT2}, s{sEo}")
        e(f"    s_mul_i32 s{sB}, s{sB}, 12288")
        e(f"    v_add_u32 v{vE}, s{sT2}, v{vE0}")
        e(f"    s_add_u32 s{sB}, s{sB}, s{sP0}")
        for _ in range(2):
            e(f"    s_sub_u32 s{sT}, s{sB}, {RB}")
            e(f"    s_cselect_b32 s{sB}, s{sB}, s{sT}")
        for t in range(4):
            e(f"    v_add_u32 v{vB[t]}, s{sB}, v{vA[t]}")
    if pipe:
        assert seq[0] == 0
        e(f"    s_lshr_b64 s[{sSeq}:{sSeq+1}], s[{sSeq}:{sSeq+1}], 4")
        e(f"    v_add_u32 v{vE}, s{sEo}, v{vE0}")
        for t in range(4):
            e(f"    v_add_u32 v{vB[t]}, s{sP0}, v{vA[t]}")
    e("L_block:")
    if not pipe: calc()
    e(f"    s_bitcmp0_b32 s{sFl}, 0")
    e(f"    s_cbranch_scc1 L_nobarc")
    e("    s_barrier")
    e("L_nobarc:")
    e(f"    ds_read_b64 v[{EE}:{EE+1}], v{vE}")
    e(f"    ds_read_b64 v[{EE+2}:{EE+3}], v{vE} offset:32")
    for t in range(0 if diag & 2 else 4):
        e(f"    ds_read_b64_tr_b16 v[{TT+4*t}:{TT+4*t+1}], v{vB[t]}")
        e(f"    ds_read_b64_tr_b16 v[{TT+4*t+2}:{TT+4*t+3}], v{vB[t]} offset:6144")
    if esm:
        e(f"    s_add_u32 s53, s53, 1")
        e(f"    s_cmp_lg_u32 s{sER}, s53")
    else:
        e(f"    s_cmp_ge_u32 s{sER}, 16")
    e(f"    s_cbranch_scc1 L_noe")
    if erot:
        e(f"    s_add_u32 s{sT2}, s{sER}, s54")
        e(f"    s_and_b32 s{sT2}, s{sT2}, 15")
    rr = sT2 if erot else sER
    e(f"    s_mul_i32 s{sT}, s{rr}, 1040")
    e(f"    s_add_u32 m0, s{sT}, s{sEn}")
    e(f"    s_lshl_b32 s{sT}, s{rr}, 12")
    e(f"    s_add_u32 s{sT}, s{sT}, s{sEs}")
    e(f"    s_add_u32 s{sER}, s{sER}, 3")
    if not diag & 1:
        e(f"    buffer_load_dwordx4 v{vL16}, s[{sE}:{sE+3}], s{sT} offen lds")
    e("L_noe:")
    if pipe: calc()
    e(f"    s_lshr_b32 s{sFl}, s{sFl}, 1")
    e(f"    s_cmp_lg_u32 s{sFl}, 1")
    for t in range(4):
        e(f"    s_waitcnt lgkmcnt({6-2*t})")
        e(f"    v_mfma_f32_16x16x32_bf16 v[{ACC+4*t}:{ACC+4*t+3}], v[{EE}:{EE+3}], v[{TT+4*t}:{TT+4*t+3}], v[{ACC+4*t}:{ACC+4*t+3}]")
    e(f"    s_cbranch_scc1 L_block")
    e(f"    s_add_u32 s{sP}, s{sP}, 1")
    e(f"    s_and_b32 s{sT}, s{sP}, 3")
    e(f"    s_cbranch_scc1 L_nextp")
    if stamp and not sdiag:
        e(f"    s_cmp_lg_u32 s{sP}, 4")
        e(f"    s_cbranch_scc1 L_nots3")
        ts(3)
        e("L_nots3:")
    A0 = TT; D0 = ACC; R0 = TT + 8
    for k in range(8):
        e(f"    v_cvt_pk_bf16_f32 v{A0+k}, v{ACC+2*k}, v{ACC+2*k+1}")
    e(f"    s_cmp_eq_u32 s{sP}, 8")
    for t in range(4):
        e(f"    v_mfma_f32_16x16x16_bf16 v[{D0+4*t}:{D0+4*t+3}], v[{A0+2*t}:{A0+2*t+1}], v[{vP}:{vP+1}], 0")
    e("    s_nop 4")
    for t in range(4):
        e(f"    v_cvt_pk_bf16_f32 v{R0+2*t}, v{D0+4*t}, v{D0+4*t+1}")
        e(f"    v_cvt_pk_bf16_f32 v{R0+2*t+1}, v{D0+4*t+2}, v{D0+4*t+3}")
        e(f"    buffer_store_dwordx2 v[{R0+2*t}:{R0+2*t+1}], v{vQo}, s[{sO}:{sO+3}], 0 offen offset:{32*t}")
    e(f"    s_cbranch_scc1 L_fin")
    S0 = EE
    e(f"    v_mfma_f32_16x16x32_bf16 v[{S0}:{S0+3}], v[{R0}:{R0+3}], v[{vQD}:{vQD+3}], 0")
    e(f"    v_mfma_f32_16x16x32_bf16 v[{S0}:{S0+3}], v[{R0+4}:{R0+7}], v[{vQD+4}:{vQD+7}], v[{S0}:{S0+3}]")
    e(f"    s_lshl_b32 s{sT}, s{sC}, 10")
    e(f"    v_add_u32 v{vE}, s{sT}, v{vSR}")
    for r in range(16):
        e(f"    v_mov_b32 v{ACC+r}, 0")
    e(f"    ds_write_b128 v{vE}, v[{S0}:{S0+3}]")
    e(f"    s_mov_b32 s{sO+2}, 3072")
    e("    s_waitcnt lgkmcnt(0)")
    e("L_nextp:")
    e(f"    s_add_u32 s{sP0}, s{sP0}, {196608 - RB}")
    e(f"    s_sub_u32 s{sT}, s{sP0}, {RB}")
    e(f"    s_cselect_b32 s{sP0}, s{sP0}, s{sT}")
    e(f"    s_mov_b32 s{sT}, s{sEo}")
    e(f"    s_mov_b32 s{sEo}, s{sEn}")
    e(f"    s_mov_b32 s{sEn}, s{sT}")
    e(f"    s_branch L_period")
    e("L_qread:")
    e(f"    v_and_b32 v1, 7, v0")
    e(f"    v_mul_u32_u24 v1, 0x180, v1")
    e(f"    v_lshrrev_b32 v2, 4, v0")
    e(f"    v_lshl_add_u32 v1, v2, 3, v1")
    e(f"    s_lshl_b32 s{sT}, s{sC}, 7")
    e(f"    s_add_u32 s{sT}, s{sT}, {QOFF}")
    e(f"    v_add_u32 v1, s{sT}, v1")
    for t in range(4):
        e(f"    ds_read_b64 v[{vQD+2*t}:{vQD+2*t+1}], v1 offset:{32*t}")
    e("    s_waitcnt lgkmcnt(0)")
    e(f"    s_branch L_q0done")
    e("L_softmax:")
    X = TT; Y = TT + 12
    for m in range(3):
        e(f"    ds_read_b128 v[{X+4*m}:{X+4*m+3}], v{vSR} offset:{m*1024}")
    for m in range(1, 3):
        e(f"    s_waitcnt lgkmcnt({2-m})")
        for k in range(4):
            e(f"    v_add_f32 v{X+k}, v{X+k}, v{X+4*m+k}")
    def round4():
        e(f"    v_cvt_pk_bf16_f32 v{Y}, v{X}, v{X+1}")
        e(f"    v_cvt_pk_bf16_f32 v{Y+1}, v{X+2}, v{X+3}")
        e(f"    v_lshlrev_b32 v{X}, 16, v{Y}")
        e(f"    v_and_b32 v{X+1}, s{sMSK}, v{Y}")
        e(f"    v_lshlrev_b32 v{X+2}, 16, v{Y+1}")
        e(f"    v_and_b32 v{X+3}, s{sMSK}, v{Y+1}")
    round4()
    for i in range(4):
        e(f"    v_mul_f32 v{X+i}, s{sSC}, v{X+i}")
    round4()
    def allreduce(op):
        for sw in ("v_permlane16_swap_b32", "v_permlane32_swap_b32"):
            e(f"    v_mov_b32 v{Y+1}, v{Y}")
            e(f"    s_nop 1")
            e(f"    {sw} v{Y}, v{Y+1}")
            e(f"    s_nop 1")
            e(f"    {op} v{Y}, v{Y}, v{Y+1}")
    e(f"    v_max3_f32 v{Y}, v{X}, v{X+1}, v{X+2}")
    e(f"    v_max_f32 v{Y}, v{Y}, v{X+3}")
    allreduce("v_max_f32")
    for i in range(4):
        e(f"    v_sub_f32 v{X+i}, v{X+i}, v{Y}")
    for i in range(4):
        e(f"    v_mul_f32 v{X+i}, s{sL2E}, v{X+i}")
    for i in range(4):
        e(f"    v_exp_f32 v{X+i}, v{X+i}")
    e("    s_nop 0")
    e(f"    v_add_f32 v{Y}, v{X}, v{X+1}")
    e(f"    v_add_f32 v{Y+2}, v{X+2}, v{X+3}")
    e(f"    v_add_f32 v{Y}, v{Y}, v{Y+2}")
    allreduce("v_add_f32")
    e(f"    v_rcp_f32 v{Y}, v{Y}")
    e("    s_nop 0")
    for i in range(4):
        e(f"    v_mul_f32 v{X+i}, v{X+i}, v{Y}")
    e(f"    v_cvt_pk_bf16_f32 v{vP}, v{X}, v{X+1}")
    e(f"    v_cvt_pk_bf16_f32 v{vP+1}, v{X+2}, v{X+3}")
    if not sdiag: ts(4)
    e(f"    s_branch L_q0done")
    e("L_fin:")
    if stamp:
        e(f"    s_cmp_eq_u32 s{sW}, 0")
        e(f"    s_cbranch_scc1 L_fin2")
        e(f"    s_mov_b32 s{sTS+10}, s{sTS}")
        e("L_fin2:")
        e("    s_waitcnt vmcnt(0)")
        ts(6)
        e(f"    s_getreg_b32 s{sTS+14}, hwreg(HW_REG_XCC_ID)")
        e(f"    s_getreg_b32 s{sT}, hwreg(HW_REG_HW_ID)")
        e(f"    s_and_b32 s{sTS+14}, s{sTS+14}, 15")
        e(f"    s_lshl_b32 s{sT}, s{sT}, 4")
        e(f"    s_or_b32 s{sTS+14}, s{sTS+14}, s{sT}")
        e(f"    s_mov_b32 s62, 0x100000")
        e(f"    s_mov_b32 s63, 0x20000")
        e("    s_waitcnt lgkmcnt(0)")
        for k in range(8):
            e(f"    v_mov_b32 v{ACC+k}, s{sTS+2*k}")
        e(f"    s_mul_i32 s{sT}, s2, {160+32*xw}")
        e(f"    s_lshr_b32 s{sW}, s{sW}, 1")
        e(f"    s_add_u32 s{sT}, s{sT}, s{sW}")
        e(f"    v_mov_b32 v2, s{sT}")
        e(f"    buffer_store_dwordx4 v[{ACC}:{ACC+3}], v2, s[60:63], 0 offen")
        e(f"    buffer_store_dwordx4 v[{ACC+4}:{ACC+7}], v2, s[60:63], 0 offen offset:16")
    e("L_end:")
    e("    s_endpgm")
    e('.section .rodata,"a"')
    e(".p2align 6")
    e(f".amdhsa_kernel {NAME}_kernel")
    e(f"  .amdhsa_next_free_vgpr {NV}")
    e(f"  .amdhsa_next_free_sgpr {80 if stamp else 56}")
    e(f"  .amdhsa_accum_offset {(NV+3)//4*4}")
    e("  .amdhsa_group_segment_fixed_size 0")
    e("  .amdhsa_kernarg_size 64")
    e("  .amdhsa_user_sgpr_count 2")
    e("  .amdhsa_user_sgpr_kernarg_segment_ptr 1")
    e("  .amdhsa_system_sgpr_workgroup_id_x 1")
    e("  .amdhsa_float_denorm_mode_32 3")
    e(".end_amdhsa_kernel")
    return "\n".join(L) + "\n"

if __name__ == "__main__":
    ap = argparse.ArgumentParser()
    ap.add_argument("-o", default="-")
    for k, d in dict(W=19, R=120, Wend=32, nend=4, Wbeg=19, wmin=16, wmax=24, sh=3, cb=16, al=6, rng=8, ema=0, integ=0, diag=0, esm=1, erot=0, xw=0, nvg=64, fast0=0, sdiag=0, cpf=0, qpos=1, elate=1, poll=0, bpos=15, pipe=0).items():
        ap.add_argument("--" + k, type=int, default=d)
    ap.add_argument("--stamp", action="store_true")
    ap.add_argument("--ramp", default="")
    a = vars(ap.parse_args()); o = a.pop("o")
    (sys.stdout if o == "-" else open(o, "w")).write(gen(**a))
```

```python
import sys, argparse

NAME = "standalone__low_rank_proj_linformer__sampling"
HEADER = """; Kernarg layout for this problem (64 bytes, ptrs only, base s[0:1]):
"""
DOC = """;
"""

def schedule(W, R):
    def grp(x):
        return 4 * (x // 64) + (x % 32) // 8
    done = [max(grp(x) for x in range(12 * b, 12 * b + 12)) for b in range(128)]
    slack = min(16 * grp(x + R) - (16 * (done[x // 12] + 1) + 15 + W) for x in range(1536 - R))
    assert slack >= 0, slack
    seq = sorted(range(16), key=lambda b: (done[b], b))
    first = [int(i == 0 or done[seq[i]] != done[seq[i - 1]]) for i in range(16)]
    assert sorted(set(done[:16])) == list(range(1, 12))
    return seq, first, slack

def gen(W=19, R=120, wmin=16, wmax=24, sh=3, cb=32, al=6, rng=8, ramp="89:13", bq=1, lastc=0, defer=1, cend=92, Wbeg=19, qe=0, unr=0, bp=4, pre=0, dn=0, clk=0, stamp=False):
    seq, first, slack = schedule(33, R)
    assert seq[-3:] == [12, 13, 15]
    SEQ = sum(b << (4 * i) for i, b in enumerate(seq))
    FL = sum(f << i for i, f in enumerate(first)) | (1 << 16)
    FL_LAST = FL | (7 << 13)
    RB = R * 1024
    ES = 16 * 1040
    EOFF = RB
    SOFF = RB + 2 * ES
    COFF = SOFF + 3072
    QOFF = COFF + 16
    LDS = QOFF + 3072
    assert LDS <= 163840
    L = []; e = L.append
    sTS = 64
    def ts(k):
        if stamp:
            e(f"    s_memrealtime s[{sTS+2*k}:{sTS+2*k+1}]")
    def align():
        if al: e(f".p2align {al}")
    def enc(w):
        return ((w >> 4) << 22) | (w & 15)
    sD, sE, sO = 16, 20, 28
    sW = 3
    sQi, sT = 35, 36
    sU = [40, 41, 42, 43]; mU = [44, 45, 46, 47]
    DU = (0, 4096, 32768, 36864)
    e(HEADER.rstrip())
    e(f"; @launch grid=(256,1,1) block=(320,1,1) lds={LDS}")
    e(DOC.rstrip())
    e('.amdgcn_target "amdgcn-amd-amdhsa--gfx950"')
    e(".text")
    e(f".globl {NAME}_kernel")
    e(".p2align 8")
    e(f".type {NAME}_kernel,@function")
    e(f"{NAME}_kernel:")
    e("    s_load_dwordx8 s[4:11], s[0:1], 0          ; q k v e")
    ts(0)
    e("    s_getpc_b64 s[20:21]")
    e("L_pc:")
    e("    s_movk_i32 s23, 0xe000")
    e("    s_mov_b32 s22, L_end - L_pc")
    e("    v_lshl_add_u32 v3, v0, 7, s23")
    e("    s_mov_b32 s23, 0x20000")
    e("    buffer_load_dword v63, v3, s[20:23], 0 offen")
    e(f"    v_readfirstlane_b32 s{sW}, v0               ; 64 * wave")
    e("    v_and_b32 v2, 48, v0")
    e("    v_lshlrev_b32 v1, 3, v0")
    e("    s_cmpk_ge_u32 s2, 0x100")
    e("    s_cbranch_scc1 L_end")
    e("    s_mul_i32 s32, s2, 786432")
    e(f"    s_cmp_lg_u32 s{sW}, 0")
    e("    s_cbranch_scc1 L_cons")
    sI, sTh, sMk, sX, sInc, sN = 49, 48, 50, 51, 52, 53
    e("; ---------------- loader")
    e("    v_xor_b32 v1, v1, v2")
    e(f"    s_mov_b32 s{sD+2}, 786432")
    e("    v_lshlrev_b32 v1, 1, v1")
    e(f"    s_mov_b32 s{sD+3}, 0x20000")
    e(f"    s_movk_i32 s{sU[1]}, 0x1000")
    e(f"    s_lshl_b32 s{sU[2]}, s{sU[1]}, 3")
    e(f"    s_mov_b32 m0, 0")
    e("    s_waitcnt lgkmcnt(0)")
    ts(1)
    e(f"    s_add_u32 s{sD}, s6, s32")
    e(f"    s_addc_u32 s{sD+1}, s7, 0")
    e("L_first:                                       ; group 0: ring offset = memory offset, m0 serves as both")
    for k, x in enumerate((sU[1], sU[2], sU[1], sU[2])):
        e(f"    buffer_load_dwordx4 v1, s[{sD}:{sD+3}], m0 offen nt lds")
        e(f"    s_xor_b32 m0, m0, s{x}")
        if k < 3: e("    s_nop 0")
    e("    s_addk_i32 m0, 0x400")
    e(f"    s_cmp_lg_u32 m0, s{sU[1]}")
    e("    s_cbranch_scc1 L_first")
    ts(2)
    if clk: e("    s_memtime s[56:57]")
    if stamp:
        e(f"    s_load_dwordx2 s[60:61], s[0:1], 56")
    e(f"    s_mov_b32 s{sQi}, 1")
    e(f"    s_movk_i32 s{sU[0]}, 0x2000")
    e(f"    s_movk_i32 s{sU[1]}, 0x3000")
    e(f"    s_add_u32 s{sU[3]}, s{sU[2]}, s{sU[1]}")
    e(f"    s_add_u32 s{sU[2]}, s{sU[2]}, s{sU[0]}")
    e(f"    s_mov_b64 s[{mU[0]}:{mU[1]}], s[{sU[0]}:{sU[1]}]")
    e(f"    s_mov_b64 s[{mU[2]}:{mU[3]}], s[{sU[2]}:{sU[3]}]")
    e(f"    s_mov_b32 s{sMk}, 0x00c0000f")
    e(f"    s_mov_b32 s{sTh}, {enc(Wbeg):#x}")
    e(f"    v_mov_b32 v2, {COFF}")
    e(f"    v_mov_b32 v3, {enc(W):#x}")
    e(f"    v_mov_b32 v4, v1")
    e(f"    ds_write_b32 v2, v3")
    e(f"    s_mov_b32 s54, 0x01010101")
    if unr:
        assert not lastc and not qe
        e("L_lgrp:")
        for pos in range(16):
            u, i = pos & 3, pos >> 2
            e(f"    s_mov_b32 m0, s{mU[u]}")
            if pre:
                e(f"    s_waitcnt vmcnt({pre})")
            e(f"L_poll{pos}:")
            e(f"    s_getreg_b32 s{sX}, hwreg(HW_REG_IB_STS)")
            e(f"    s_and_b32 s{sX}, s{sX}, s{sMk}")
            e(f"    s_cmp_ge_u32 s{sX}, s{sTh}")
            e(f"    s_cbranch_scc1 L_poll{pos}")
            e(f"    buffer_load_dwordx4 v1, s[{sD}:{sD+3}], s{sU[u]} offen offset:{i*1024} nt lds")
            if dn and pos < 12:
                assert stamp
                e(f"    s_nop {min(dn,16)-1}")
                if dn > 16: e(f"    s_nop {dn-17}")
            if dn > 4 and pos >= 12:
                e(f"    s_nop {min(dn-4,16)-1}")
            if pos == bp - 1:
                e(f"    s_cmp_lt_u32 s{sQi}, 2")
                e(f"    s_cbranch_scc1 L_lnobar")
                e(f"    s_waitcnt vmcnt({16 + bp})")
                e("    s_barrier")
                e("L_lnobar:")
            if pos == 8:
                e(f"    ds_read_b32 v3, v2")
            if pos == 10:
                e(f"    s_add_u32 s{sQi}, s{sQi}, 1")
                e(f"    s_and_b32 s{sT}, s{sQi}, 3")
                e(f"    s_cselect_b32 s{sT}, 8, 40")
                e(f"    s_lshl_b32 s{sT}, s{sT}, 10")
            if pos == 11:
                e(f"    s_waitcnt lgkmcnt(0)")
                e(f"    v_readfirstlane_b32 s{sTh}, v3")
            if pos >= 12:
                e(f"    s_add_u32 s{sU[u]}, s{sU[u]}, s{sT}")
                e(f"    s_add_u32 s{mU[u]}, s{mU[u]}, s{sT}")
                e(f"    s_sub_u32 s37, s{mU[u]}, {RB}")
                e(f"    s_cselect_b32 s{mU[u]}, s{mU[u]}, s37")
        assert bp <= 10
    else:
        e("L_lgrp:")
        e(f"    s_mov_b32 s{sI}, 0")
        e(f"    s_mov_b32 s{sInc}, s54")
        e(f"    v_mov_b32 v1, v4")
        e("L_lquad:")
        for u in range(4):
            e(f"    s_add_u32 m0, s{mU[u]}, s{sI}")
            e(f"L_poll{u}:                                       ; wait until fewer than W loads are in flight")
            e(f"    s_getreg_b32 s{sX}, hwreg(HW_REG_IB_STS)")
            e(f"    s_and_b32 s{sX}, s{sX}, s{sMk}")
            e(f"    s_cmp_ge_u32 s{sX}, s{sTh}")
            e(f"    s_cbranch_scc1 L_poll{u}")
            e(f"    buffer_load_dwordx4 v1, s[{sD}:{sD+3}], s{sU[u]} offen nt lds")
            if dn:
                assert stamp
                e(f"    s_nop {dn-1}")
        if lastc:
            e(f"    s_and_b32 s{sX}, s{sInc}, 63")
            e(f"    s_lshl_b32 s{sX}, s{sX}, 10")
            e(f"    s_add_u32 s{sI}, s{sI}, s{sX}")
            e(f"    v_add_u32 v1, s{sX}, v1")
            e(f"    s_lshr_b32 s{sInc}, s{sInc}, 8")
            e(f"    s_cbranch_scc0 L_lgend")
            e(f"    s_bitcmp0_b32 s{sInc}, {8 * (3 - bq)}")
            e(f"    s_cbranch_scc1 L_lquad")
            if bq > 1:
                e(f"    s_lshr_b32 s{sX}, s{sInc}, {8 * (4 - bq)}")
                e(f"    s_cbranch_scc1 L_lquad")
        else:
            e(f"    v_add_u32 v1, 0x400, v1")
            e(f"    s_addk_i32 s{sI}, 0x400")
            e(f"    s_cmpk_eq_u32 s{sI}, 0x1000")
            e(f"    s_cbranch_scc1 L_lgend")
            e(f"    s_cmpk_lg_u32 s{sI}, {bq * 0x400:#x}")
            e(f"    s_cbranch_scc1 L_lquad")
        e(f"    ds_read_b32 v3, v2")
        if qe:
            e(f"    s_sub_u32 s{sX}, s{sQi}, 2")
            e(f"    s_cmp_ge_u32 s{sX}, {qe - 2}")
        else:
            e(f"    s_cmp_lt_u32 s{sQi}, 2")
        e(f"    s_cbranch_scc1 L_lquad")
        e(f"    s_waitcnt vmcnt({16 + 4 * bq})")
        e("    s_barrier")
        e(f"    s_branch L_lquad")
        e("L_lgend:")
        if qe:
            e(f"    s_cmp_lt_u32 s{sQi}, {qe}")
            e(f"    s_cbranch_scc1 L_lgend2")
            e(f"    s_waitcnt vmcnt(32)")
            e("    s_barrier")
            e("L_lgend2:")
        e(f"    s_add_u32 s{sQi}, s{sQi}, 1")
        e(f"    s_and_b32 s{sT}, s{sQi}, 3")
        e(f"    s_cselect_b32 s{sT}, 8, 40")
        e(f"    s_lshl_b32 s{sT}, s{sT}, 10")
        e(f"    s_waitcnt lgkmcnt(0)")
        e(f"    v_readfirstlane_b32 s{sTh}, v3")
        for u in range(4):
            e(f"    s_add_u32 s{sU[u]}, s{sU[u]}, s{sT}")
            e(f"    s_add_u32 s{mU[u]}, s{mU[u]}, s{sT}")
            e(f"    s_sub_u32 s37, s{mU[u]}, {RB}")
            e(f"    s_cselect_b32 s{mU[u]}, s{mU[u]}, s37")
    e(f"    s_cmp_eq_u32 s{sQi}, 48")
    e(f"    s_cbranch_scc1 L_lswitch")
    e(f"    s_cmp_lt_u32 s{sQi}, 95")
    e(f"    s_cbranch_scc1 L_lgrp")
    if lastc:
        pos = ((7 * 192 + 152) % R)
        assert pos + 40 <= R
        e(f"    s_cmp_lg_u32 s{sQi}, 95")
        e(f"    s_cbranch_scc1 L_ldone")
        for u in range(1, 4):
            e(f"    s_add_u32 s{sU[u]}, s{sU[0]}, {u*1024}")
            e(f"    s_add_u32 s{mU[u]}, s{mU[0]}, {u*1024}")
        e(f"    s_mov_b32 s54, 0x01041c04")
        e(f"    s_mov_b32 s{sTh}, {enc(32):#x}")
        e(f"    s_branch L_lgrp")
        e("L_ldone:")
    else:
        e(f"    v_mov_b32 v1, v4")
        order = [(0, i) for i in range(4)] + [(1, i) for i in range(4)] + [(u, i) for i in range(4) for u in (2, 3)]
        for pos, (u, i) in enumerate(order):
            e(f"    s_mov_b32 m0, s{mU[u]}")
            e(f"    s_waitcnt vmcnt(31)")
            if pos == 15: e("    s_barrier")
            e(f"    buffer_load_dwordx4 v1, s[{sD}:{sD+3}], s{sU[u]} offen offset:{i*1024} nt lds")
    for n in (16, 12, 8):
        e(f"    s_waitcnt vmcnt({n})")
        e("    s_barrier")
    e("    s_waitcnt vmcnt(0)")
    ts(5)
    e("    s_barrier")
    if stamp:
        for k in (3, 4):
            e(f"    s_mov_b32 s{sTS+2*k}, s{sTS}")
        if clk:
            e("    s_memtime s[58:59]")
            e("    s_waitcnt lgkmcnt(0)")
            e(f"    s_sub_u32 s{sTS+6}, s58, s56")
        e("    s_branch L_fin")
    else:
        e("    s_endpgm")
    e("L_lswitch:                                     ; K issued: switch to V")
    e(f"    s_add_u32 s{sD}, s8, s32")
    e(f"    s_addc_u32 s{sD+1}, s9, 0")
    for u in range(4):
        e(f"    s_sub_u32 s{sU[u]}, s{sU[u]}, s{sD+2}")
    e(f"    s_branch L_lgrp")
    align()
    e("; ---------------- balancer")
    e("L_ctl:")
    e("    s_load_dwordx2 s[16:17], s[0:1], 48        ; d_debug")
    e("    s_mov_b32 s18, 256")
    e("    s_mov_b32 s19, 0x20000")
    e("    v_and_b32 v0, 63, v0")
    e("    v_lshlrev_b32 v1, 12, v0")
    e("    s_getreg_b32 s20, hwreg(HW_REG_HW_ID, 8, 7)")
    e("    v_lshlrev_b32 v9, 4, v0")
    e("    s_lshr_b32 s21, s20, 5")
    e("    s_and_b32 s20, s20, 15")
    e("    s_lshl_b32 s21, s21, 4")
    e("    s_or_b32 s20, s20, s21")
    e(f"    v_mov_b32 v4, {COFF}")
    e("    s_mov_b32 s21, 4")
    e("    v_mov_b32 v5, 0")
    e("    v_mov_b32 v8, 0")
    e("    s_mul_i32 s22, s2, 3072")
    e("    s_mov_b32 s26, 3072")
    e("    s_mov_b32 s27, 0x20000")
    e(f"    s_mov_b32 m0, {QOFF}")
    e("    s_waitcnt lgkmcnt(0)")
    e("    s_add_u32 s24, s4, s22")
    e("    s_addc_u32 s25, s5, 0")
    e("    s_barrier")
    for k in range(3):
        e(f"    buffer_load_dwordx4 v9, s[24:27], 0 offen offset:{k*1024} nt lds   ; q -> LDS")
    e("    s_barrier")
    e("    s_barrier")
    e("    s_waitcnt vmcnt(0)")
    def cbody(vr):
        e("    s_barrier")
        e("    s_waitcnt vmcnt(2)")
        e(f"    s_sub_u32 s22, s21, {2 + rng}")
        e("    v_mov_b32 v3, s21")
        e(f"    v_subrev_u32 v6, s22, v{vr}")
        e(f"    v_cmp_ne_u32 s[30:31], 0, v{vr}")
        e(f"    v_cmp_gt_u32 vcc, {2*rng}, v6")
        e(f"    v_subrev_u32 v6, {rng}, v6")
        e("    buffer_store_byte v3, v1, s[16:19], s20 offen")
        e("    s_and_b64 vcc, vcc, s[30:31]")
        e(f"    buffer_load_ubyte v{vr}, v0, s[16:19], 0 offen sc1")
        e("    v_cndmask_b32 v6, 0, v6, vcc")
        for ctrl in ("row_shr:1", "row_shr:2", "row_shr:4", "row_shr:8"):
            e("    s_nop 1")
            e(f"    v_add_u32_dpp v6, v6, v6 {ctrl} row_mask:0xf bank_mask:0xf bound_ctrl:1")
        e("    s_add_u32 s21, s21, 1")
        e("    v_readlane_b32 s22, v6, 15")
        e("    v_readlane_b32 s23, v6, 31")
        e("    v_readlane_b32 s28, v6, 47")
        e("    v_readlane_b32 s29, v6, 63")
        e("    s_add_i32 s22, s22, s23")
        e("    s_add_i32 s28, s28, s29")
        e("    s_add_i32 s22, s22, s28")
        e(f"    s_add_i32 s22, s22, {cb}")
        e(f"    s_ashr_i32 s22, s22, {sh}")
        e(f"    s_add_i32 s22, s22, {W}")
        e(f"    s_max_i32 s22, s22, {wmin}")
        e(f"    s_min_i32 s22, s22, {wmax}")
        e(f"    s_cmp_lt_u32 s21, 8")
        e(f"    s_cselect_b32 s22, {W}, s22")
        for item in ramp.split(","):
            if item:
                q0, add = item.split(":")
                e(f"    s_cmp_ge_u32 s21, {q0}")
                e(f"    s_cselect_b32 s23, {add}, 0")
                e(f"    s_add_i32 s22, s22, s23")
        e(f"    s_min_i32 s22, s22, 32")
        e(f"    s_and_b32 s23, s22, 15")
        e(f"    s_lshr_b32 s22, s22, 4")
        e(f"    s_lshl_b32 s22, s22, 22")
        e(f"    s_or_b32 s22, s22, s23")
        e("    v_mov_b32 v7, s22")
        e("    ds_write_b32 v4, v7")
    e("L_cgrp:")
    cbody(5)
    cbody(8)
    e(f"    s_cmp_lt_u32 s21, {cend}")
    e("    s_cbranch_scc1 L_cgrp")
    e("    s_endpgm")
    sC, sP, sP0, sEo, sEn, sFl, sSeq, sB, sT2 = 33, 34, 37, 38, 39, 40, 42, 45, 46
    sSC, sL2E, sMSK, sER, sEs, sBi = 47, 48, 49, 51, 52, 53
    vA = [4, 5, 6, 7]; vB = [8, 9, 10, 11]; vE0, vE, vL16, vQo, vSR = 12, 13, 14, 15, 3
    vP, vQD, ACC, TT, EE = 16, 20, 28, 44, 60
    NV = 64
    align()
    e("; ---------------- consumers")
    e("L_cons:")
    e("    s_load_dwordx4 s[12:15], s[0:1], 32        ; f out")
    if stamp:
        e(f"    s_load_dwordx2 s[60:61], s[0:1], 56")
    e(f"    s_cmp_eq_u32 s{sW}, 256")
    e(f"    s_cbranch_scc1 L_ctl")
    e(f"    s_lshr_b32 s{sC}, s{sW}, 6")
    e(f"    s_sub_u32 s{sC}, s{sC}, 1")
    e("    v_and_b32 v0, 63, v0")
    e(f"    v_lshlrev_b32 v{vL16}, 4, v0")
    e("    v_and_b32 v1, 15, v0")
    e("    v_lshrrev_b32 v2, 4, v0                    ; g")
    e(f"    v_mul_u32_u24 v{vQo}, 0x180, v1")
    e(f"    s_lshl_b32 s{sT}, s{sC}, 7")
    e(f"    v_lshl_add_u32 v{vQo}, v2, 3, v{vQo}")
    e(f"    v_add_u32 v{vQo}, s{sT}, v{vQo}")
    e(f"    v_mul_u32_u24 v{vE0}, 0x410, v1")
    e(f"    v_lshl_add_u32 v{vE0}, v2, 3, v{vE0}")
    e(f"    v_lshrrev_b32 v{vA[1]}, 2, v0")
    e(f"    v_mul_u32_u24 v{vA[1]}, 3, v{vA[1]}")
    e(f"    v_add_u32 v{vA[1]}, s{sC}, v{vA[1]}")
    e(f"    v_bfe_u32 v{vA[2]}, v{vA[1]}, 1, 2")
    e(f"    v_lshlrev_b32 v{vA[2]}, 5, v{vA[2]}")
    e(f"    v_lshl_add_u32 v{vA[2]}, v{vA[1]}, 7, v{vA[2]}")
    e(f"    v_and_b32 v{vA[3]}, 3, v0")
    e(f"    v_lshl_add_u32 v{vA[0]}, v{vA[3]}, 3, v{vA[2]}")
    for t in range(1, 4):
        e(f"    v_xor_b32 v{vA[t]}, {32*t}, v{vA[0]}")
    e(f"    v_add_u32 v{vSR}, {SOFF}, v{vL16}")
    e(f"    v_lshlrev_b32 v2, 2, v2")
    e(f"    v_sub_u32 v2, v1, v2")
    e(f"    v_mov_b32 v{TT}, 0x3f80")
    e(f"    v_mov_b32 v{TT+1}, 0x3f800000")
    e(f"    v_mov_b32 v{vP}, 0")
    e(f"    v_mov_b32 v{vP+1}, 0")
    for k in range(4):
        e(f"    v_cmp_eq_u32 vcc, {k}, v2")
        e(f"    s_nop 1")
        e(f"    v_cndmask_b32 v{vP+(k>>1)}, v{vP+(k>>1)}, v{TT+(k&1)}, vcc")
    e(f"    s_mov_b32 s{sP}, 0")
    e(f"    s_mov_b32 s{sP0}, 0")
    e(f"    s_mov_b32 s{sEo}, {EOFF}")
    e(f"    s_mov_b32 s{sEn}, {EOFF+ES}")
    for r in range(16):
        e(f"    v_mov_b32 v{ACC+r}, 0")
    e(f"    s_mov_b32 s{sE+2}, 65536")
    e(f"    s_mov_b32 s{sE+3}, 0x20000")
    e(f"    s_mul_i32 s{sT}, s{sC}, 1040")
    e(f"    s_add_u32 m0, s{sT}, s{sEo}")
    e(f"    s_lshl_b32 s{sB}, s{sC}, 12")
    e("    s_mul_i32 s32, s2, 3072")
    e(f"    s_mov_b32 s{sO+2}, 0")
    e(f"    s_mov_b32 s{sO+3}, 0x20000")
    e("    s_waitcnt lgkmcnt(0)")
    ts(1)
    e(f"    s_mov_b32 s{sE}, s10")
    e(f"    s_mov_b32 s{sE+1}, s11")
    e(f"    s_add_u32 s{sO}, s14, s32")
    e(f"    s_addc_u32 s{sO+1}, s15, 0")
    e("L_e0:                                          ; period-0 projection rows c, c+3, ...")
    e(f"    buffer_load_dwordx4 v{vL16}, s[{sE}:{sE+3}], s{sB} offen lds")
    e(f"    s_addk_i32 m0, {3*1040}")
    e(f"    s_addk_i32 s{sB}, {3*4096}")
    e(f"    s_cmp_lt_u32 s{sB}, s{sE+2}")
    e(f"    s_cbranch_scc1 L_e0")
    e("L_period:")
    e(f"    s_mov_b32 s{sSeq}, {SEQ & 0xffffffff:#x}")
    e(f"    s_mov_b32 s{sSeq+1}, {SEQ >> 32:#x}")
    e(f"    s_mov_b32 s{sFl}, {FL:#x}")
    e(f"    s_mov_b32 s{sER}, s{sC}")
    e(f"    s_mov_b32 s{sBi}, -1")
    e(f"    s_add_u32 s{sEs}, s{sP}, 1")
    e(f"    s_and_b32 s{sEs}, s{sEs}, 3")
    e(f"    s_cbranch_scc1 L_nosw")
    e(f"    s_mov_b32 s{sE}, s12")
    e(f"    s_mov_b32 s{sE+1}, s13")
    e("L_nosw:")
    e(f"    s_lshl_b32 s{sEs}, s{sEs}, 10")
    e(f"    s_cmp_eq_u32 s{sP}, 7")
    e(f"    s_cselect_b32 s{sER}, 16, s{sER}")
    e(f"    s_cselect_b32 s{sFl}, {FL_LAST:#x}, s{sFl}")
    e("    s_barrier")
    if stamp:
        e(f"    s_cmp_lg_u32 s{sP}, 0")
        e(f"    s_cbranch_scc1 L_nots2")
        ts(2)
        e("L_nots2:")
    e(f"    s_cmp_eq_u32 s{sP}, 3")
    e(f"    s_cbranch_scc1 L_qread")
    if defer:
        e(f"    s_cmp_eq_u32 s{sP}, 4")
        e(f"    s_cbranch_scc1 L_epi")
    e(f"    s_cmp_eq_u32 s{sP}, {5 if defer else 4}")
    e(f"    s_cbranch_scc1 L_softmax")
    e("L_q0done:")
    e("    s_waitcnt vmcnt(0)")
    e("L_block:")
    e(f"    s_and_b32 s{sB}, s{sSeq}, 15")
    e(f"    s_lshr_b64 s[{sSeq}:{sSeq+1}], s[{sSeq}:{sSeq+1}], 4")
    e(f"    s_lshl_b32 s{sT2}, s{sB}, 6")
    e(f"    s_add_u32 s{sT2}, s{sT2}, s{sEo}")
    e(f"    s_mul_i32 s{sB}, s{sB}, 12288")
    e(f"    v_add_u32 v{vE}, s{sT2}, v{vE0}")
    e(f"    s_add_u32 s{sB}, s{sB}, s{sP0}")
    for _ in range(2):
        e(f"    s_sub_u32 s{sT}, s{sB}, {RB}")
        e(f"    s_cselect_b32 s{sB}, s{sB}, s{sT}")
    for t in range(4):
        e(f"    v_add_u32 v{vB[t]}, s{sB}, v{vA[t]}")
    e(f"    s_bitcmp0_b32 s{sFl}, 0")
    e(f"    s_cbranch_scc1 L_nobarc")
    e("    s_barrier")
    e("L_nobarc:")
    e(f"    ds_read_b64 v[{EE}:{EE+1}], v{vE}")
    e(f"    ds_read_b64 v[{EE+2}:{EE+3}], v{vE} offset:32")
    for t in range(4):
        e(f"    ds_read_b64_tr_b16 v[{TT+4*t}:{TT+4*t+1}], v{vB[t]}")
        e(f"    ds_read_b64_tr_b16 v[{TT+4*t+2}:{TT+4*t+3}], v{vB[t]} offset:6144")
    e(f"    s_add_u32 s{sBi}, s{sBi}, 1")
    e(f"    s_cmp_lg_u32 s{sER}, s{sBi}")
    e(f"    s_cbranch_scc1 L_noe")
    e(f"    s_mul_i32 s{sT}, s{sER}, 1040")
    e(f"    s_add_u32 m0, s{sT}, s{sEn}")
    e(f"    s_lshl_b32 s{sT}, s{sER}, 12")
    e(f"    s_add_u32 s{sT}, s{sT}, s{sEs}")
    e(f"    s_add_u32 s{sER}, s{sER}, 3")
    e(f"    buffer_load_dwordx4 v{vL16}, s[{sE}:{sE+3}], s{sT} offen lds")
    e("L_noe:")
    e(f"    s_lshr_b32 s{sFl}, s{sFl}, 1")
    e(f"    s_cmp_lg_u32 s{sFl}, 1")
    for t in range(4):
        e(f"    s_waitcnt lgkmcnt({6-2*t})")
        e(f"    v_mfma_f32_16x16x32_bf16 v[{ACC+4*t}:{ACC+4*t+3}], v[{EE}:{EE+3}], v[{TT+4*t}:{TT+4*t+3}], v[{ACC+4*t}:{ACC+4*t+3}]")
    e(f"    s_cbranch_scc1 L_block")
    e(f"    s_add_u32 s{sP}, s{sP}, 1")
    e(f"    s_and_b32 s{sT}, s{sP}, {7 if defer else 3}")
    e(f"    s_cbranch_scc1 L_nextp")
    A0 = TT; D0 = ACC; R0 = TT + 8
    e("L_epi:")
    if stamp:
        e(f"    s_cmp_lg_u32 s{sP}, 4")
        e(f"    s_cbranch_scc1 L_nots3")
        ts(3)
        e("L_nots3:")
    for k in range(8):
        e(f"    v_cvt_pk_bf16_f32 v{A0+k}, v{ACC+2*k}, v{ACC+2*k+1}")
    e(f"    s_cmp_eq_u32 s{sP}, 8")
    for t in range(4):
        e(f"    v_mfma_f32_16x16x16_bf16 v[{D0+4*t}:{D0+4*t+3}], v[{A0+2*t}:{A0+2*t+1}], v[{vP}:{vP+1}], 0")
    e("    s_nop 4")
    for t in range(4):
        e(f"    v_cvt_pk_bf16_f32 v{R0+2*t}, v{D0+4*t}, v{D0+4*t+1}")
        e(f"    v_cvt_pk_bf16_f32 v{R0+2*t+1}, v{D0+4*t+2}, v{D0+4*t+3}")
        e(f"    buffer_store_dwordx2 v[{R0+2*t}:{R0+2*t+1}], v{vQo}, s[{sO}:{sO+3}], 0 offen offset:{32*t}")
    e(f"    s_cbranch_scc1 L_fin")
    S0 = EE
    e(f"    v_mfma_f32_16x16x32_bf16 v[{S0}:{S0+3}], v[{R0}:{R0+3}], v[{vQD}:{vQD+3}], 0")
    e(f"    v_mfma_f32_16x16x32_bf16 v[{S0}:{S0+3}], v[{R0+4}:{R0+7}], v[{vQD+4}:{vQD+7}], v[{S0}:{S0+3}]")
    e(f"    s_lshl_b32 s{sT}, s{sC}, 10")
    e(f"    v_add_u32 v{vE}, s{sT}, v{vSR}")
    for r in range(16):
        e(f"    v_mov_b32 v{ACC+r}, 0")
    e(f"    ds_write_b128 v{vE}, v[{S0}:{S0+3}]")
    e(f"    s_mov_b32 s{sO+2}, 3072")
    e("    s_waitcnt lgkmcnt(0)")
    if defer:
        e("    s_waitcnt vmcnt(4)")
        e(f"    s_branch L_block")
    e("L_nextp:")
    e(f"    s_add_u32 s{sP0}, s{sP0}, {196608 - RB}")
    e(f"    s_sub_u32 s{sT}, s{sP0}, {RB}")
    e(f"    s_cselect_b32 s{sP0}, s{sP0}, s{sT}")
    e(f"    s_mov_b32 s{sT}, s{sEo}")
    e(f"    s_mov_b32 s{sEo}, s{sEn}")
    e(f"    s_mov_b32 s{sEn}, s{sT}")
    e(f"    s_branch L_period")
    e("L_qread:")
    e(f"    v_and_b32 v1, 7, v0")
    e(f"    v_mul_u32_u24 v1, 0x180, v1")
    e(f"    v_lshrrev_b32 v2, 4, v0")
    e(f"    v_lshl_add_u32 v1, v2, 3, v1")
    e(f"    s_lshl_b32 s{sT}, s{sC}, 7")
    e(f"    s_add_u32 s{sT}, s{sT}, {QOFF}")
    e(f"    v_add_u32 v1, s{sT}, v1")
    for t in range(4):
        e(f"    ds_read_b64 v[{vQD+2*t}:{vQD+2*t+1}], v1 offset:{32*t}")
    e("    s_waitcnt lgkmcnt(0)")
    e(f"    s_branch L_q0done")
    e("L_softmax:")
    X = TT; Y = TT + 12
    for m in range(3):
        e(f"    ds_read_b128 v[{X+4*m}:{X+4*m+3}], v{vSR} offset:{m*1024}")
    e(f"    s_mov_b32 s{sSC}, 0x3d93cd3a                ; 192^-0.5")
    e(f"    s_mov_b32 s{sL2E}, 0x3fb8aa3b                ; log2(e)")
    e(f"    s_mov_b32 s{sMSK}, 0xffff0000")
    for m in range(1, 3):
        e(f"    s_waitcnt lgkmcnt({2-m})")
        for k in range(4):
            e(f"    v_add_f32 v{X+k}, v{X+k}, v{X+4*m+k}")
    def round4():
        e(f"    v_cvt_pk_bf16_f32 v{Y}, v{X}, v{X+1}")
        e(f"    v_cvt_pk_bf16_f32 v{Y+1}, v{X+2}, v{X+3}")
        e(f"    v_lshlrev_b32 v{X}, 16, v{Y}")
        e(f"    v_and_b32 v{X+1}, s{sMSK}, v{Y}")
        e(f"    v_lshlrev_b32 v{X+2}, 16, v{Y+1}")
        e(f"    v_and_b32 v{X+3}, s{sMSK}, v{Y+1}")
    round4()
    for i in range(4):
        e(f"    v_mul_f32 v{X+i}, s{sSC}, v{X+i}")
    round4()
    def allreduce(op):
        for sw in ("v_permlane16_swap_b32", "v_permlane32_swap_b32"):
            e(f"    v_mov_b32 v{Y+1}, v{Y}")
            e(f"    s_nop 1")
            e(f"    {sw} v{Y}, v{Y+1}")
            e(f"    s_nop 1")
            e(f"    {op} v{Y}, v{Y}, v{Y+1}")
    e(f"    v_max3_f32 v{Y}, v{X}, v{X+1}, v{X+2}")
    e(f"    v_max_f32 v{Y}, v{Y}, v{X+3}")
    allreduce("v_max_f32")
    for i in range(4):
        e(f"    v_sub_f32 v{X+i}, v{X+i}, v{Y}")
    for i in range(4):
        e(f"    v_mul_f32 v{X+i}, s{sL2E}, v{X+i}")
    for i in range(4):
        e(f"    v_exp_f32 v{X+i}, v{X+i}")
    e("    s_nop 0")
    e(f"    v_add_f32 v{Y}, v{X}, v{X+1}")
    e(f"    v_add_f32 v{Y+2}, v{X+2}, v{X+3}")
    e(f"    v_add_f32 v{Y}, v{Y}, v{Y+2}")
    allreduce("v_add_f32")
    e(f"    v_rcp_f32 v{Y}, v{Y}")
    e("    s_nop 0")
    for i in range(4):
        e(f"    v_mul_f32 v{X+i}, v{X+i}, v{Y}")
    e(f"    v_cvt_pk_bf16_f32 v{vP}, v{X}, v{X+1}")
    e(f"    v_cvt_pk_bf16_f32 v{vP+1}, v{X+2}, v{X+3}")
    ts(4)
    e(f"    s_branch L_q0done")
    e("L_fin:")
    if stamp:
        e(f"    s_cmp_eq_u32 s{sW}, 0")
        e(f"    s_cbranch_scc1 L_fin2")
        e(f"    s_mov_b32 s{sTS+10}, s{sTS}")
        e("L_fin2:")
        e("    s_waitcnt vmcnt(0)")
        ts(6)
        e(f"    s_getreg_b32 s{sTS+14}, hwreg(HW_REG_XCC_ID)")
        e(f"    s_getreg_b32 s{sT}, hwreg(HW_REG_HW_ID)")
        e(f"    s_and_b32 s{sTS+14}, s{sTS+14}, 15")
        e(f"    s_lshl_b32 s{sT}, s{sT}, 4")
        e(f"    s_or_b32 s{sTS+14}, s{sTS+14}, s{sT}")
        e(f"    s_mov_b32 s62, 0x100000")
        e(f"    s_mov_b32 s63, 0x20000")
        e("    s_waitcnt lgkmcnt(0)")
        for k in range(8):
            e(f"    v_mov_b32 v{ACC+k}, s{sTS+2*k}")
        e(f"    s_mul_i32 s{sT}, s2, 160")
        e(f"    s_lshr_b32 s{sW}, s{sW}, 1")
        e(f"    s_add_u32 s{sT}, s{sT}, s{sW}")
        e(f"    v_mov_b32 v2, s{sT}")
        e(f"    buffer_store_dwordx4 v[{ACC}:{ACC+3}], v2, s[60:63], 0 offen")
        e(f"    buffer_store_dwordx4 v[{ACC+4}:{ACC+7}], v2, s[60:63], 0 offen offset:16")
    e("L_end:")
    e("    s_endpgm")
    e('.section .rodata,"a"')
    e(".p2align 6")
    e(f".amdhsa_kernel {NAME}_kernel")
    e(f"  .amdhsa_next_free_vgpr {NV}")
    e(f"  .amdhsa_next_free_sgpr {80 if stamp else 56}")
    e(f"  .amdhsa_accum_offset {(NV+3)//4*4}")
    e("  .amdhsa_group_segment_fixed_size 0")
    e("  .amdhsa_kernarg_size 64")
    e("  .amdhsa_user_sgpr_count 2")
    e("  .amdhsa_user_sgpr_kernarg_segment_ptr 1")
    e("  .amdhsa_system_sgpr_workgroup_id_x 1")
    e("  .amdhsa_float_denorm_mode_32 3")
    e(".end_amdhsa_kernel")
    return "\n".join(L) + "\n"

if __name__ == "__main__":
    ap = argparse.ArgumentParser()
    ap.add_argument("-o", default="-")
    for k, d in dict(W=19, R=120, wmin=16, wmax=24, sh=3, cb=32, al=6, rng=8, bq=1, lastc=0, defer=1, cend=92, Wbeg=19, qe=0, unr=0, bp=4, pre=0, dn=0, clk=0).items():
        ap.add_argument("--" + k, type=int, default=d)
    ap.add_argument("--ramp", default="89:13")
    ap.add_argument("--stamp", action="store_true")
    a = vars(ap.parse_args()); o = a.pop("o")
    (sys.stdout if o == "-" else open(o, "w")).write(gen(**a))
```

```python
import sys, argparse

NAME = "standalone__low_rank_proj_linformer__sampling"
HEADER = """; Kernarg layout for this problem (64 bytes, ptrs only, base s[0:1]):
"""
DOC = """;
"""

def schedule(W, R):
    def grp(x):
        return 4 * (x // 64) + (x % 32) // 8
    done = [max(grp(x) for x in range(12 * b, 12 * b + 12)) for b in range(128)]
    slack = min(16 * grp(x + R) - (16 * (done[x // 12] + 1) + 15 + W) for x in range(1536 - R))
    assert slack >= 0, slack
    seq = sorted(range(16), key=lambda b: (done[b], b))
    first = [int(i == 0 or done[seq[i]] != done[seq[i - 1]]) for i in range(16)]
    assert sorted(set(done[:16])) == list(range(1, 12))
    return seq, first, slack

def gen(W=19, R=120, wmin=16, wmax=24, sh=3, cb=32, al=6, rng=8, ramp="89:13", bq=1, lastc=0, defer=1, cend=92, Wbeg=19, qe=0, unr=0, bp=4, pre=0, dn=0, clk=0, gran=1, lal=-1, keep=0, oob=0, lb=15, e0late=0, tight=0, stamp=False):
    seq, first, slack = schedule(33, R)
    assert seq[-3:] == [12, 13, 15]
    SEQ = sum(b << (4 * i) for i, b in enumerate(seq))
    FL = sum(f << i for i, f in enumerate(first)) | (1 << 16)
    FL_LAST = FL | (7 << 13)
    RB = R * 1024
    ES = 16 * 1040
    EOFF = RB
    SOFF = RB + 2 * ES
    COFF = SOFF + 3072
    QOFF = COFF + 16
    LDS = QOFF + 3072
    assert LDS <= 163840
    L = []; e = L.append
    sTS = 64
    def ts(k):
        if stamp:
            e(f"    s_memrealtime s[{sTS+2*k}:{sTS+2*k+1}]")
    def align():
        if al: e(f".p2align {al}")
    def enc(w):
        return ((w >> 4) << 22) | (w & 15)
    sD, sE, sO = 16, 20, 28
    sW = 3
    sQi, sT = 35, 36
    sU = [40, 41, 42, 43]; mU = [44, 45, 46, 47]
    DU = (0, 4096, 32768, 36864)
    e(HEADER.rstrip())
    e(f"; @launch grid=(256,1,1) block=(320,1,1) lds={LDS}")
    e(DOC.rstrip())
    e('.amdgcn_target "amdgcn-amd-amdhsa--gfx950"')
    e(".text")
    e(f".globl {NAME}_kernel")
    e(".p2align 8")
    e(f".type {NAME}_kernel,@function")
    e(f"{NAME}_kernel:")
    e("    s_load_dwordx8 s[4:11], s[0:1], 0          ; q k v e")
    ts(0)
    e("    s_getpc_b64 s[20:21]")
    e("L_pc:")
    e("    s_movk_i32 s23, 0xe000")
    e("    s_movk_i32 s22, 0xc00" if tight else "    s_mov_b32 s22, L_end - L_pc")
    e("    v_lshl_add_u32 v3, v0, 7, s23")
    e("    s_mov_b32 s23, 0x20000")
    e("    buffer_load_dword v63, v3, s[20:23], 0 offen")
    e(f"    v_readfirstlane_b32 s{sW}, v0               ; 64 * wave")
    e("    v_and_b32 v2, 48, v0")
    e("    v_lshlrev_b32 v1, 3, v0")
    e("    s_cmpk_ge_u32 s2, 0x100")
    e("    s_cbranch_scc1 L_end")
    e("    s_mul_i32 s32, s2, 786432")
    e(f"    s_cmp_lg_u32 s{sW}, 0")
    e("    s_cbranch_scc1 L_cons")
    sI, sTh, sMk, sX, sInc, sN = 49, 48, 50, 51, 52, 53
    e("; ---------------- loader")
    e("    v_xor_b32 v1, v1, v2")
    e(f"    s_mov_b32 s{sD+2}, 786432")
    if oob:
        assert stamp
        e("    v_add_u32 v1, 0x800000, v1")
    e("    v_lshlrev_b32 v1, 1, v1")
    e(f"    s_mov_b32 s{sD+3}, s23" if tight else f"    s_mov_b32 s{sD+3}, 0x20000")
    e(f"    s_movk_i32 s{sU[1]}, 0x1000")
    e(f"    s_lshl_b32 s{sU[2]}, s{sU[1]}, 3")
    e(f"    s_mov_b32 m0, 0")
    e("    s_waitcnt lgkmcnt(0)")
    ts(1)
    e(f"    s_add_u32 s{sD}, s6, s32")
    e(f"    s_addc_u32 s{sD+1}, s7, 0")
    e("L_first:                                       ; group 0: ring offset = memory offset, m0 serves as both")
    for k, x in enumerate((sU[1], sU[2], sU[1], sU[2])):
        e(f"    buffer_load_dwordx4 v1, s[{sD}:{sD+3}], m0 offen nt lds")
        e(f"    s_xor_b32 m0, m0, s{x}")
        if k < 3: e("    s_nop 0")
    e("    s_addk_i32 m0, 0x400")
    e(f"    s_cmp_lg_u32 m0, s{sU[1]}")
    e("    s_cbranch_scc1 L_first")
    ts(2)
    if clk: e("    s_memtime s[56:57]")
    if stamp:
        e(f"    s_load_dwordx2 s[60:61], s[0:1], 56")
    e(f"    s_mov_b32 s{sQi}, 1")
    e(f"    s_movk_i32 s{sU[0]}, 0x2000")
    e(f"    s_movk_i32 s{sU[1]}, 0x3000")
    e(f"    s_add_u32 s{sU[3]}, s{sU[2]}, s{sU[1]}")
    e(f"    s_add_u32 s{sU[2]}, s{sU[2]}, s{sU[0]}")
    e(f"    s_mov_b64 s[{mU[0]}:{mU[1]}], s[{sU[0]}:{sU[1]}]")
    e(f"    s_mov_b64 s[{mU[2]}:{mU[3]}], s[{sU[2]}:{sU[3]}]")
    e(f"    s_mov_b32 s{sMk}, 0x00c0000f")
    e(f"    s_mov_b32 s{sTh}, {enc(Wbeg):#x}")
    e(f"    v_mov_b32 v2, {COFF}")
    if tight:
        assert W == Wbeg
        e(f"    v_mov_b32 v3, s{sTh}")
    else:
        e(f"    v_mov_b32 v3, {enc(W):#x}")
    e(f"    v_mov_b32 v4, v1")
    e(f"    ds_write_b32 v2, v3")
    if lastc: e(f"    s_mov_b32 s54, 0x01010101")
    if unr:
        assert not lastc and not qe
        e("L_lgrp:")
        for pos in range(16):
            u, i = pos & 3, pos >> 2
            e(f"    s_mov_b32 m0, s{mU[u]}")
            if pre:
                e(f"    s_waitcnt vmcnt({pre})")
            e(f"L_poll{pos}:")
            e(f"    s_getreg_b32 s{sX}, hwreg(HW_REG_IB_STS)")
            e(f"    s_and_b32 s{sX}, s{sX}, s{sMk}")
            e(f"    s_cmp_ge_u32 s{sX}, s{sTh}")
            e(f"    s_cbranch_scc1 L_poll{pos}")
            e(f"    buffer_load_dwordx4 v1, s[{sD}:{sD+3}], s{sU[u]} offen offset:{i*1024} nt lds")
            if dn and pos < 12:
                assert stamp
                e(f"    s_nop {min(dn,16)-1}")
                if dn > 16: e(f"    s_nop {dn-17}")
            if dn > 4 and pos >= 12:
                e(f"    s_nop {min(dn-4,16)-1}")
            if pos == bp - 1:
                e(f"    s_cmp_lt_u32 s{sQi}, 2")
                e(f"    s_cbranch_scc1 L_lnobar")
                e(f"    s_waitcnt vmcnt({16 + bp})")
                e("    s_barrier")
                e("L_lnobar:")
            if pos == 8:
                e(f"    ds_read_b32 v3, v2")
            if pos == 10:
                e(f"    s_add_u32 s{sQi}, s{sQi}, 1")
                e(f"    s_and_b32 s{sT}, s{sQi}, 3")
                e(f"    s_cselect_b32 s{sT}, 8, 40")
                e(f"    s_lshl_b32 s{sT}, s{sT}, 10")
            if pos == 11:
                e(f"    s_waitcnt lgkmcnt(0)")
                e(f"    v_readfirstlane_b32 s{sTh}, v3")
            if pos >= 12:
                e(f"    s_add_u32 s{sU[u]}, s{sU[u]}, s{sT}")
                e(f"    s_add_u32 s{mU[u]}, s{mU[u]}, s{sT}")
                e(f"    s_sub_u32 s37, s{mU[u]}, {RB}")
                e(f"    s_cselect_b32 s{mU[u]}, s{mU[u]}, s37")
        assert bp <= 10
    else:
        if lal >= 0:
            e(".p2align 6")
            for _ in range(((lal - 8 - 4 * (keep or lastc)) % 64) // 4):
                e("    s_nop 0")
        e("L_lgrp:")
        e(f"    s_mov_b32 s{sI}, 0")
        if lastc: e(f"    s_mov_b32 s{sInc}, s54")
        elif keep: e(f"    s_mov_b32 s{sInc}, 0")
        e(f"    v_mov_b32 v1, v4")
        e("L_lquad:")
        for u in range(4):
            e(f"    s_add_u32 m0, s{mU[u]}, s{sI}")
            if u % gran == 0:
                e(f"L_poll{u}:                                       ; wait until fewer than W loads are in flight")
                e(f"    s_getreg_b32 s{sX}, hwreg(HW_REG_IB_STS)")
                e(f"    s_and_b32 s{sX}, s{sX}, s{sMk}")
                e(f"    s_cmp_ge_u32 s{sX}, s{sTh}")
                e(f"    s_cbranch_scc1 L_poll{u}")
            else:
                e("    s_nop 0")
            e(f"    buffer_load_dwordx4 v1, s[{sD}:{sD+3}], s{sU[u]} offen nt lds")
            if dn:
                assert stamp
                e(f"    s_nop {dn-1}")
        if lastc:
            e(f"    s_and_b32 s{sX}, s{sInc}, 63")
            e(f"    s_lshl_b32 s{sX}, s{sX}, 10")
            e(f"    s_add_u32 s{sI}, s{sI}, s{sX}")
            e(f"    v_add_u32 v1, s{sX}, v1")
            e(f"    s_lshr_b32 s{sInc}, s{sInc}, 8")
            e(f"    s_cbranch_scc0 L_lgend")
            e(f"    s_bitcmp0_b32 s{sInc}, {8 * (3 - bq)}")
            e(f"    s_cbranch_scc1 L_lquad")
            if bq > 1:
                e(f"    s_lshr_b32 s{sX}, s{sInc}, {8 * (4 - bq)}")
                e(f"    s_cbranch_scc1 L_lquad")
        else:
            e(f"    v_add_u32 v1, 0x400, v1")
            e(f"    s_addk_i32 s{sI}, 0x400")
            e(f"    s_cmpk_eq_u32 s{sI}, 0x1000")
            e(f"    s_cbranch_scc1 L_lgend")
            e(f"    s_cmpk_lg_u32 s{sI}, {bq * 0x400:#x}")
            e(f"    s_cbranch_scc1 L_lquad")
        e(f"    ds_read_b32 v3, v2")
        if qe:
            e(f"    s_sub_u32 s{sX}, s{sQi}, 2")
            e(f"    s_cmp_ge_u32 s{sX}, {qe - 2}")
        else:
            e(f"    s_cmp_lt_u32 s{sQi}, 2")
        e(f"    s_cbranch_scc1 L_lquad")
        e(f"    s_waitcnt vmcnt({16 + 4 * bq})")
        e("    s_barrier")
        e(f"    s_branch L_lquad")
        e("L_lgend:")
        if qe:
            e(f"    s_cmp_lt_u32 s{sQi}, {qe}")
            e(f"    s_cbranch_scc1 L_lgend2")
            e(f"    s_waitcnt vmcnt(32)")
            e("    s_barrier")
            e("L_lgend2:")
        e(f"    s_add_u32 s{sQi}, s{sQi}, 1")
        e(f"    s_and_b32 s{sT}, s{sQi}, 3")
        e(f"    s_cselect_b32 s{sT}, 8, 40")
        e(f"    s_lshl_b32 s{sT}, s{sT}, 10")
        e(f"    s_waitcnt lgkmcnt(0)")
        e(f"    v_readfirstlane_b32 s{sTh}, v3")
        for u in range(4):
            e(f"    s_add_u32 s{sU[u]}, s{sU[u]}, s{sT}")
            e(f"    s_add_u32 s{mU[u]}, s{mU[u]}, s{sT}")
            e(f"    s_sub_u32 s37, s{mU[u]}, {RB}")
            e(f"    s_cselect_b32 s{mU[u]}, s{mU[u]}, s37")
    e(f"    s_cmp_eq_u32 s{sQi}, 48")
    e(f"    s_cbranch_scc1 L_lswitch")
    e(f"    s_cmp_lt_u32 s{sQi}, 95")
    e(f"    s_cbranch_scc1 L_lgrp")
    if lastc:
        pos = ((7 * 192 + 152) % R)
        assert pos + 40 <= R
        e(f"    s_cmp_lg_u32 s{sQi}, 95")
        e(f"    s_cbranch_scc1 L_ldone")
        for u in range(1, 4):
            e(f"    s_add_u32 s{sU[u]}, s{sU[0]}, {u*1024}")
            e(f"    s_add_u32 s{mU[u]}, s{mU[0]}, {u*1024}")
        e(f"    s_mov_b32 s54, 0x01041c04")
        e(f"    s_mov_b32 s{sTh}, {enc(32):#x}")
        e(f"    s_branch L_lgrp")
        e("L_ldone:")
    else:
        e(f"    v_mov_b32 v1, v4")
        order = [(0, i) for i in range(4)] + [(1, i) for i in range(4)] + [(u, i) for i in range(4) for u in (2, 3)]
        for pos, (u, i) in enumerate(order):
            e(f"    s_mov_b32 m0, s{mU[u]}")
            e(f"    s_waitcnt vmcnt({16 + lb if pos == lb else 31})")
            if pos == lb: e("    s_barrier")
            e(f"    buffer_load_dwordx4 v1, s[{sD}:{sD+3}], s{sU[u]} offen offset:{i*1024} nt lds")
    for n in (16, 12, 8):
        e(f"    s_waitcnt vmcnt({n})")
        e("    s_barrier")
    e("    s_waitcnt vmcnt(0)")
    ts(5)
    e("    s_barrier")
    if stamp:
        for k in (3, 4):
            e(f"    s_mov_b32 s{sTS+2*k}, s{sTS}")
        if clk:
            e("    s_memtime s[58:59]")
            e("    s_waitcnt lgkmcnt(0)")
            e(f"    s_sub_u32 s{sTS+6}, s58, s56")
        e("    s_branch L_fin")
    else:
        e("    s_endpgm")
    e("L_lswitch:                                     ; K issued: switch to V")
    e(f"    s_add_u32 s{sD}, s8, s32")
    e(f"    s_addc_u32 s{sD+1}, s9, 0")
    for u in range(4):
        e(f"    s_sub_u32 s{sU[u]}, s{sU[u]}, s{sD+2}")
    e(f"    s_branch L_lgrp")
    align()
    e("; ---------------- balancer")
    e("L_ctl:")
    e("    s_load_dwordx2 s[16:17], s[0:1], 48        ; d_debug")
    e("    s_mov_b32 s18, 256")
    e("    s_mov_b32 s19, 0x20000")
    e("    v_and_b32 v0, 63, v0")
    e("    v_lshlrev_b32 v1, 12, v0")
    e("    s_getreg_b32 s20, hwreg(HW_REG_HW_ID, 8, 7)")
    e("    v_lshlrev_b32 v9, 4, v0")
    e("    s_lshr_b32 s21, s20, 5")
    e("    s_and_b32 s20, s20, 15")
    e("    s_lshl_b32 s21, s21, 4")
    e("    s_or_b32 s20, s20, s21")
    e(f"    v_mov_b32 v4, {COFF}")
    e("    s_mov_b32 s21, 4")
    e("    v_mov_b32 v5, 0")
    e("    v_mov_b32 v8, 0")
    e("    s_mul_i32 s22, s2, 3072")
    e("    s_mov_b32 s26, 3072")
    e("    s_mov_b32 s27, 0x20000")
    e(f"    s_mov_b32 m0, {QOFF}")
    e("    s_waitcnt lgkmcnt(0)")
    e("    s_add_u32 s24, s4, s22")
    e("    s_addc_u32 s25, s5, 0")
    e("    s_barrier")
    for k in range(3):
        e(f"    buffer_load_dwordx4 v9, s[24:27], 0 offen offset:{k*1024} nt lds   ; q -> LDS")
    e("    s_barrier")
    e("    s_barrier")
    e("    s_waitcnt vmcnt(0)")
    def cbody(vr):
        e("    s_barrier")
        e("    s_waitcnt vmcnt(2)")
        e(f"    s_sub_u32 s22, s21, {2 + rng}")
        e("    v_mov_b32 v3, s21")
        e(f"    v_subrev_u32 v6, s22, v{vr}")
        e(f"    v_cmp_ne_u32 s[30:31], 0, v{vr}")
        e(f"    v_cmp_gt_u32 vcc, {2*rng}, v6")
        e(f"    v_subrev_u32 v6, {rng}, v6")
        e("    buffer_store_byte v3, v1, s[16:19], s20 offen")
        e("    s_and_b64 vcc, vcc, s[30:31]")
        e(f"    buffer_load_ubyte v{vr}, v0, s[16:19], 0 offen sc1")
        e("    v_cndmask_b32 v6, 0, v6, vcc")
        for ctrl in ("row_shr:1", "row_shr:2", "row_shr:4", "row_shr:8"):
            e("    s_nop 1")
            e(f"    v_add_u32_dpp v6, v6, v6 {ctrl} row_mask:0xf bank_mask:0xf bound_ctrl:1")
        e("    s_add_u32 s21, s21, 1")
        e("    v_readlane_b32 s22, v6, 15")
        e("    v_readlane_b32 s23, v6, 31")
        e("    v_readlane_b32 s28, v6, 47")
        e("    v_readlane_b32 s29, v6, 63")
        e("    s_add_i32 s22, s22, s23")
        e("    s_add_i32 s28, s28, s29")
        e("    s_add_i32 s22, s22, s28")
        e(f"    s_add_i32 s22, s22, {cb}")
        e(f"    s_ashr_i32 s22, s22, {sh}")
        e(f"    s_add_i32 s22, s22, {W}")
        e(f"    s_max_i32 s22, s22, {wmin}")
        e(f"    s_min_i32 s22, s22, {wmax}")
        e(f"    s_cmp_lt_u32 s21, 8")
        e(f"    s_cselect_b32 s22, {W}, s22")
        for item in ramp.split(","):
            if item:
                q0, add = item.split(":")
                e(f"    s_cmp_ge_u32 s21, {q0}")
                e(f"    s_cselect_b32 s23, {add}, 0")
                e(f"    s_add_i32 s22, s22, s23")
        e(f"    s_min_i32 s22, s22, 32")
        e(f"    s_and_b32 s23, s22, 15")
        e(f"    s_lshr_b32 s22, s22, 4")
        e(f"    s_lshl_b32 s22, s22, 22")
        e(f"    s_or_b32 s22, s22, s23")
        e("    v_mov_b32 v7, s22")
        e("    ds_write_b32 v4, v7")
    e("L_cgrp:")
    cbody(5)
    cbody(8)
    e(f"    s_cmp_lt_u32 s21, {cend}")
    e("    s_cbranch_scc1 L_cgrp")
    e("    s_endpgm")
    sC, sP, sP0, sEo, sEn, sFl, sSeq, sB, sT2 = 33, 34, 37, 38, 39, 40, 42, 45, 46
    sSC, sL2E, sMSK, sER, sEs, sBi = 47, 48, 49, 51, 52, 53
    vA = [4, 5, 6, 7]; vB = [8, 9, 10, 11]; vE0, vE, vL16, vQo, vSR = 12, 13, 14, 15, 3
    vP, vQD, ACC, TT, EE = 16, 20, 28, 44, 60
    NV = 64
    align()
    e("; ---------------- consumers")
    e("L_cons:")
    e("    s_load_dwordx4 s[12:15], s[0:1], 32        ; f out")
    if stamp:
        e(f"    s_load_dwordx2 s[60:61], s[0:1], 56")
    e(f"    s_cmp_eq_u32 s{sW}, 256")
    e(f"    s_cbranch_scc1 L_ctl")
    e(f"    s_lshr_b32 s{sC}, s{sW}, 6")
    e(f"    s_sub_u32 s{sC}, s{sC}, 1")
    e("    v_and_b32 v0, 63, v0")
    e(f"    v_lshlrev_b32 v{vL16}, 4, v0")
    e("    v_and_b32 v1, 15, v0")
    e("    v_lshrrev_b32 v2, 4, v0                    ; g")
    e(f"    v_mul_u32_u24 v{vQo}, 0x180, v1")
    e(f"    s_lshl_b32 s{sT}, s{sC}, 7")
    e(f"    v_lshl_add_u32 v{vQo}, v2, 3, v{vQo}")
    e(f"    v_add_u32 v{vQo}, s{sT}, v{vQo}")
    e(f"    v_mul_u32_u24 v{vE0}, 0x410, v1")
    e(f"    v_lshl_add_u32 v{vE0}, v2, 3, v{vE0}")
    e(f"    v_lshrrev_b32 v{vA[1]}, 2, v0")
    e(f"    v_mul_u32_u24 v{vA[1]}, 3, v{vA[1]}")
    e(f"    v_add_u32 v{vA[1]}, s{sC}, v{vA[1]}")
    e(f"    v_bfe_u32 v{vA[2]}, v{vA[1]}, 1, 2")
    e(f"    v_lshlrev_b32 v{vA[2]}, 5, v{vA[2]}")
    e(f"    v_lshl_add_u32 v{vA[2]}, v{vA[1]}, 7, v{vA[2]}")
    e(f"    v_and_b32 v{vA[3]}, 3, v0")
    e(f"    v_lshl_add_u32 v{vA[0]}, v{vA[3]}, 3, v{vA[2]}")
    for t in range(1, 4):
        e(f"    v_xor_b32 v{vA[t]}, {32*t}, v{vA[0]}")
    e(f"    v_add_u32 v{vSR}, {SOFF}, v{vL16}")
    e(f"    v_lshlrev_b32 v2, 2, v2")
    e(f"    v_sub_u32 v2, v1, v2")
    e(f"    v_mov_b32 v{TT}, 0x3f80")
    e(f"    v_mov_b32 v{TT+1}, 0x3f800000")
    e(f"    v_mov_b32 v{vP}, 0")
    e(f"    v_mov_b32 v{vP+1}, 0")
    for k in range(4):
        e(f"    v_cmp_eq_u32 vcc, {k}, v2")
        e(f"    s_nop 1")
        e(f"    v_cndmask_b32 v{vP+(k>>1)}, v{vP+(k>>1)}, v{TT+(k&1)}, vcc")
    e(f"    s_mov_b32 s{sP}, 0")
    e(f"    s_mov_b32 s{sP0}, 0")
    e(f"    s_mov_b32 s{sEo}, {EOFF}")
    e(f"    s_mov_b32 s{sEn}, {EOFF+ES}")
    for r in range(16):
        e(f"    v_mov_b32 v{ACC+r}, 0")
    e(f"    s_mov_b32 s{sE+2}, 65536")
    e(f"    s_mov_b32 s{sE+3}, 0x20000")
    e(f"    s_mul_i32 s{sT}, s{sC}, 1040")
    e(f"    s_add_u32 m0, s{sT}, s{sEo}")
    e(f"    s_lshl_b32 s{sB}, s{sC}, 12")
    e("    s_mul_i32 s32, s2, 3072")
    e(f"    s_mov_b32 s{sO+2}, 0")
    e(f"    s_mov_b32 s{sO+3}, 0x20000")
    e("    s_waitcnt lgkmcnt(0)")
    ts(1)
    e(f"    s_mov_b32 s{sE}, s10")
    e(f"    s_mov_b32 s{sE+1}, s11")
    e(f"    s_add_u32 s{sO}, s14, s32")
    e(f"    s_addc_u32 s{sO+1}, s15, 0")
    if e0late:
        e("    s_barrier")
    e("L_e0:                                          ; period-0 projection rows c, c+3, ...")
    e(f"    buffer_load_dwordx4 v{vL16}, s[{sE}:{sE+3}], s{sB} offen lds")
    e(f"    s_addk_i32 m0, {3*1040}")
    e(f"    s_addk_i32 s{sB}, {3*4096}")
    e(f"    s_cmp_lt_u32 s{sB}, s{sE+2}")
    e(f"    s_cbranch_scc1 L_e0")
    e("L_period:")
    e(f"    s_mov_b32 s{sSeq}, {SEQ & 0xffffffff:#x}")
    e(f"    s_mov_b32 s{sSeq+1}, {SEQ >> 32:#x}")
    e(f"    s_mov_b32 s{sFl}, {FL:#x}")
    e(f"    s_mov_b32 s{sER}, s{sC}")
    e(f"    s_mov_b32 s{sBi}, -1")
    e(f"    s_add_u32 s{sEs}, s{sP}, 1")
    e(f"    s_and_b32 s{sEs}, s{sEs}, 3")
    e(f"    s_cbranch_scc1 L_nosw")
    e(f"    s_mov_b32 s{sE}, s12")
    e(f"    s_mov_b32 s{sE+1}, s13")
    e("L_nosw:")
    e(f"    s_lshl_b32 s{sEs}, s{sEs}, 10")
    e(f"    s_cmp_eq_u32 s{sP}, 7")
    e(f"    s_cselect_b32 s{sER}, 16, s{sER}")
    e(f"    s_cselect_b32 s{sFl}, {FL_LAST:#x}, s{sFl}")
    if e0late:
        assert first[:3] == [1, 0, 1]
        e(f"    s_cmp_eq_u32 s{sP}, 0")
        e(f"    s_cselect_b32 s{sFl}, {FL & ~4:#x}, s{sFl}")
    e("    s_barrier")
    if stamp:
        e(f"    s_cmp_lg_u32 s{sP}, 0")
        e(f"    s_cbranch_scc1 L_nots2")
        ts(2)
        e("L_nots2:")
    e(f"    s_cmp_eq_u32 s{sP}, 3")
    e(f"    s_cbranch_scc1 L_qread")
    if defer:
        e(f"    s_cmp_eq_u32 s{sP}, 4")
        e(f"    s_cbranch_scc1 L_epi")
    e(f"    s_cmp_eq_u32 s{sP}, {5 if defer else 4}")
    e(f"    s_cbranch_scc1 L_softmax")
    e("L_q0done:")
    e("    s_waitcnt vmcnt(0)")
    e("L_block:")
    e(f"    s_and_b32 s{sB}, s{sSeq}, 15")
    e(f"    s_lshr_b64 s[{sSeq}:{sSeq+1}], s[{sSeq}:{sSeq+1}], 4")
    e(f"    s_lshl_b32 s{sT2}, s{sB}, 6")
    e(f"    s_add_u32 s{sT2}, s{sT2}, s{sEo}")
    e(f"    s_mul_i32 s{sB}, s{sB}, 12288")
    e(f"    v_add_u32 v{vE}, s{sT2}, v{vE0}")
    e(f"    s_add_u32 s{sB}, s{sB}, s{sP0}")
    for _ in range(2):
        e(f"    s_sub_u32 s{sT}, s{sB}, {RB}")
        e(f"    s_cselect_b32 s{sB}, s{sB}, s{sT}")
    for t in range(4):
        e(f"    v_add_u32 v{vB[t]}, s{sB}, v{vA[t]}")
    e(f"    s_bitcmp0_b32 s{sFl}, 0")
    e(f"    s_cbranch_scc1 L_nobarc")
    e("    s_barrier")
    e("L_nobarc:")
    e(f"    ds_read_b64 v[{EE}:{EE+1}], v{vE}")
    e(f"    ds_read_b64 v[{EE+2}:{EE+3}], v{vE} offset:32")
    for t in range(4):
        e(f"    ds_read_b64_tr_b16 v[{TT+4*t}:{TT+4*t+1}], v{vB[t]}")
        e(f"    ds_read_b64_tr_b16 v[{TT+4*t+2}:{TT+4*t+3}], v{vB[t]} offset:6144")
    e(f"    s_add_u32 s{sBi}, s{sBi}, 1")
    e(f"    s_cmp_lg_u32 s{sER}, s{sBi}")
    e(f"    s_cbranch_scc1 L_noe")
    e(f"    s_mul_i32 s{sT}, s{sER}, 1040")
    e(f"    s_add_u32 m0, s{sT}, s{sEn}")
    e(f"    s_lshl_b32 s{sT}, s{sER}, 12")
    e(f"    s_add_u32 s{sT}, s{sT}, s{sEs}")
    e(f"    s_add_u32 s{sER}, s{sER}, 3")
    e(f"    buffer_load_dwordx4 v{vL16}, s[{sE}:{sE+3}], s{sT} offen lds")
    e("L_noe:")
    e(f"    s_lshr_b32 s{sFl}, s{sFl}, 1")
    e(f"    s_cmp_lg_u32 s{sFl}, 1")
    for t in range(4):
        e(f"    s_waitcnt lgkmcnt({6-2*t})")
        e(f"    v_mfma_f32_16x16x32_bf16 v[{ACC+4*t}:{ACC+4*t+3}], v[{EE}:{EE+3}], v[{TT+4*t}:{TT+4*t+3}], v[{ACC+4*t}:{ACC+4*t+3}]")
    e(f"    s_cbranch_scc1 L_block")
    e(f"    s_add_u32 s{sP}, s{sP}, 1")
    e(f"    s_and_b32 s{sT}, s{sP}, {7 if defer else 3}")
    e(f"    s_cbranch_scc1 L_nextp")
    A0 = TT; D0 = ACC; R0 = TT + 8
    e("L_epi:")
    if stamp:
        e(f"    s_cmp_lg_u32 s{sP}, 4")
        e(f"    s_cbranch_scc1 L_nots3")
        ts(3)
        e("L_nots3:")
    for k in range(8):
        e(f"    v_cvt_pk_bf16_f32 v{A0+k}, v{ACC+2*k}, v{ACC+2*k+1}")
    e(f"    s_cmp_eq_u32 s{sP}, 8")
    for t in range(4):
        e(f"    v_mfma_f32_16x16x16_bf16 v[{D0+4*t}:{D0+4*t+3}], v[{A0+2*t}:{A0+2*t+1}], v[{vP}:{vP+1}], 0")
    e("    s_nop 4")
    for t in range(4):
        e(f"    v_cvt_pk_bf16_f32 v{R0+2*t}, v{D0+4*t}, v{D0+4*t+1}")
        e(f"    v_cvt_pk_bf16_f32 v{R0+2*t+1}, v{D0+4*t+2}, v{D0+4*t+3}")
        e(f"    buffer_store_dwordx2 v[{R0+2*t}:{R0+2*t+1}], v{vQo}, s[{sO}:{sO+3}], 0 offen offset:{32*t}")
    e(f"    s_cbranch_scc1 L_fin")
    S0 = EE
    e(f"    v_mfma_f32_16x16x32_bf16 v[{S0}:{S0+3}], v[{R0}:{R0+3}], v[{vQD}:{vQD+3}], 0")
    e(f"    v_mfma_f32_16x16x32_bf16 v[{S0}:{S0+3}], v[{R0+4}:{R0+7}], v[{vQD+4}:{vQD+7}], v[{S0}:{S0+3}]")
    e(f"    s_lshl_b32 s{sT}, s{sC}, 10")
    e(f"    v_add_u32 v{vE}, s{sT}, v{vSR}")
    for r in range(16):
        e(f"    v_mov_b32 v{ACC+r}, 0")
    e(f"    ds_write_b128 v{vE}, v[{S0}:{S0+3}]")
    e(f"    s_mov_b32 s{sO+2}, 3072")
    e("    s_waitcnt lgkmcnt(0)")
    if defer:
        e("    s_waitcnt vmcnt(4)")
        e(f"    s_branch L_block")
    e("L_nextp:")
    e(f"    s_add_u32 s{sP0}, s{sP0}, {196608 - RB}")
    e(f"    s_sub_u32 s{sT}, s{sP0}, {RB}")
    e(f"    s_cselect_b32 s{sP0}, s{sP0}, s{sT}")
    e(f"    s_mov_b32 s{sT}, s{sEo}")
    e(f"    s_mov_b32 s{sEo}, s{sEn}")
    e(f"    s_mov_b32 s{sEn}, s{sT}")
    e(f"    s_branch L_period")
    e("L_qread:")
    e(f"    v_and_b32 v1, 7, v0")
    e(f"    v_mul_u32_u24 v1, 0x180, v1")
    e(f"    v_lshrrev_b32 v2, 4, v0")
    e(f"    v_lshl_add_u32 v1, v2, 3, v1")
    e(f"    s_lshl_b32 s{sT}, s{sC}, 7")
    e(f"    s_add_u32 s{sT}, s{sT}, {QOFF}")
    e(f"    v_add_u32 v1, s{sT}, v1")
    for t in range(4):
        e(f"    ds_read_b64 v[{vQD+2*t}:{vQD+2*t+1}], v1 offset:{32*t}")
    e("    s_waitcnt lgkmcnt(0)")
    e(f"    s_branch L_q0done")
    e("L_softmax:")
    X = TT; Y = TT + 12
    for m in range(3):
        e(f"    ds_read_b128 v[{X+4*m}:{X+4*m+3}], v{vSR} offset:{m*1024}")
    e(f"    s_mov_b32 s{sSC}, 0x3d93cd3a                ; 192^-0.5")
    e(f"    s_mov_b32 s{sL2E}, 0x3fb8aa3b                ; log2(e)")
    e(f"    s_mov_b32 s{sMSK}, 0xffff0000")
    for m in range(1, 3):
        e(f"    s_waitcnt lgkmcnt({2-m})")
        for k in range(4):
            e(f"    v_add_f32 v{X+k}, v{X+k}, v{X+4*m+k}")
    def round4():
        e(f"    v_cvt_pk_bf16_f32 v{Y}, v{X}, v{X+1}")
        e(f"    v_cvt_pk_bf16_f32 v{Y+1}, v{X+2}, v{X+3}")
        e(f"    v_lshlrev_b32 v{X}, 16, v{Y}")
        e(f"    v_and_b32 v{X+1}, s{sMSK}, v{Y}")
        e(f"    v_lshlrev_b32 v{X+2}, 16, v{Y+1}")
        e(f"    v_and_b32 v{X+3}, s{sMSK}, v{Y+1}")
    round4()
    for i in range(4):
        e(f"    v_mul_f32 v{X+i}, s{sSC}, v{X+i}")
    round4()
    def allreduce(op):
        for sw in ("v_permlane16_swap_b32", "v_permlane32_swap_b32"):
            e(f"    v_mov_b32 v{Y+1}, v{Y}")
            e(f"    s_nop 1")
            e(f"    {sw} v{Y}, v{Y+1}")
            e(f"    s_nop 1")
            e(f"    {op} v{Y}, v{Y}, v{Y+1}")
    e(f"    v_max3_f32 v{Y}, v{X}, v{X+1}, v{X+2}")
    e(f"    v_max_f32 v{Y}, v{Y}, v{X+3}")
    allreduce("v_max_f32")
    for i in range(4):
        e(f"    v_sub_f32 v{X+i}, v{X+i}, v{Y}")
    for i in range(4):
        e(f"    v_mul_f32 v{X+i}, s{sL2E}, v{X+i}")
    for i in range(4):
        e(f"    v_exp_f32 v{X+i}, v{X+i}")
    e("    s_nop 0")
    e(f"    v_add_f32 v{Y}, v{X}, v{X+1}")
    e(f"    v_add_f32 v{Y+2}, v{X+2}, v{X+3}")
    e(f"    v_add_f32 v{Y}, v{Y}, v{Y+2}")
    allreduce("v_add_f32")
    e(f"    v_rcp_f32 v{Y}, v{Y}")
    e("    s_nop 0")
    for i in range(4):
        e(f"    v_mul_f32 v{X+i}, v{X+i}, v{Y}")
    e(f"    v_cvt_pk_bf16_f32 v{vP}, v{X}, v{X+1}")
    e(f"    v_cvt_pk_bf16_f32 v{vP+1}, v{X+2}, v{X+3}")
    ts(4)
    e(f"    s_branch L_q0done")
    e("L_fin:")
    if stamp:
        e(f"    s_cmp_eq_u32 s{sW}, 0")
        e(f"    s_cbranch_scc1 L_fin2")
        e(f"    s_mov_b32 s{sTS+10}, s{sTS}")
        e("L_fin2:")
        e("    s_waitcnt vmcnt(0)")
        ts(6)
        e(f"    s_getreg_b32 s{sTS+14}, hwreg(HW_REG_XCC_ID)")
        e(f"    s_getreg_b32 s{sT}, hwreg(HW_REG_HW_ID)")
        e(f"    s_and_b32 s{sTS+14}, s{sTS+14}, 15")
        e(f"    s_lshl_b32 s{sT}, s{sT}, 4")
        e(f"    s_or_b32 s{sTS+14}, s{sTS+14}, s{sT}")
        e(f"    s_mov_b32 s62, 0x100000")
        e(f"    s_mov_b32 s63, 0x20000")
        e("    s_waitcnt lgkmcnt(0)")
        for k in range(8):
            e(f"    v_mov_b32 v{ACC+k}, s{sTS+2*k}")
        e(f"    s_mul_i32 s{sT}, s2, 160")
        e(f"    s_lshr_b32 s{sW}, s{sW}, 1")
        e(f"    s_add_u32 s{sT}, s{sT}, s{sW}")
        e(f"    v_mov_b32 v2, s{sT}")
        e(f"    buffer_store_dwordx4 v[{ACC}:{ACC+3}], v2, s[60:63], 0 offen")
        e(f"    buffer_store_dwordx4 v[{ACC+4}:{ACC+7}], v2, s[60:63], 0 offen offset:16")
    e("L_end:")
    e("    s_endpgm")
    e('.section .rodata,"a"')
    e(".p2align 6")
    e(f".amdhsa_kernel {NAME}_kernel")
    e(f"  .amdhsa_next_free_vgpr {NV}")
    e(f"  .amdhsa_next_free_sgpr {80 if stamp else 56}")
    e(f"  .amdhsa_accum_offset {(NV+3)//4*4}")
    e("  .amdhsa_group_segment_fixed_size 0")
    e("  .amdhsa_kernarg_size 64")
    e("  .amdhsa_user_sgpr_count 2")
    e("  .amdhsa_user_sgpr_kernarg_segment_ptr 1")
    e("  .amdhsa_system_sgpr_workgroup_id_x 1")
    e("  .amdhsa_float_denorm_mode_32 3")
    e(".end_amdhsa_kernel")
    return "\n".join(L) + "\n"

if __name__ == "__main__":
    ap = argparse.ArgumentParser()
    ap.add_argument("-o", default="-")
    for k, d in dict(W=19, R=120, wmin=16, wmax=24, sh=3, cb=32, al=6, rng=8, bq=1, lastc=0, defer=1, cend=92, Wbeg=19, qe=0, unr=0, bp=4, pre=0, dn=0, clk=0, gran=1, lal=-1, keep=0, oob=0, lb=15, e0late=0, tight=0).items():
        ap.add_argument("--" + k, type=int, default=d)
    ap.add_argument("--ramp", default="89:13")
    ap.add_argument("--stamp", action="store_true")
    a = vars(ap.parse_args()); o = a.pop("o")
    (sys.stdout if o == "-" else open(o, "w")).write(gen(**a))
```

```python
import sys, argparse

NAME = "standalone__low_rank_proj_linformer__sampling"
HEADER = """; Kernarg layout for this problem (64 bytes, ptrs only, base s[0:1]):
"""
DOC = """;
"""

def schedule(W, R):
    def grp(x):
        return 4 * (x // 64) + (x % 32) // 8
    done = [max(grp(x) for x in range(12 * b, 12 * b + 12)) for b in range(128)]
    slack = min(16 * grp(x + R) - (16 * (done[x // 12] + 1) + 15 + W) for x in range(1536 - R))
    assert slack >= 0, slack
    seq = sorted(range(16), key=lambda b: (done[b], b))
    first = [int(i == 0 or done[seq[i]] != done[seq[i - 1]]) for i in range(16)]
    assert sorted(set(done[:16])) == list(range(1, 12))
    return seq, first, slack

def gen(W=19, R=120, wmin=16, wmax=24, sh=3, cb=32, al=6, rng=8, ramp="89:13", bq=1, lastc=0, defer=1, cend=92, Wbeg=19, qe=0, unr=0, bp=4, pre=0, dn=0, clk=0, gran=1, lal=-1, keep=0, oob=0, lb=15, e0late=0, tight=0, cpf=1, stamp=False):
    seq, first, slack = schedule(33, R)
    assert seq[-3:] == [12, 13, 15]
    SEQ = sum(b << (4 * i) for i, b in enumerate(seq))
    FL = sum(f << i for i, f in enumerate(first)) | (1 << 16)
    FL_LAST = FL | (7 << 13)
    RB = R * 1024
    ES = 16 * 1040
    EOFF = RB
    SOFF = RB + 2 * ES
    COFF = SOFF + 3072
    QOFF = COFF + 16
    LDS = QOFF + 3072
    assert LDS <= 163840
    L = []; e = L.append
    sTS = 64
    def ts(k):
        if stamp:
            e(f"    s_memrealtime s[{sTS+2*k}:{sTS+2*k+1}]")
    def align():
        if al: e(f".p2align {al}")
    def enc(w):
        return ((w >> 4) << 22) | (w & 15)
    sD, sE, sO = 16, 20, 28
    sW = 3
    sQi, sT = 35, 36
    sU = [40, 41, 42, 43]; mU = [44, 45, 46, 47]
    DU = (0, 4096, 32768, 36864)
    e(HEADER.rstrip())
    e(f"; @launch grid=(256,1,1) block=(320,1,1) lds={LDS}")
    e(DOC.rstrip())
    e('.amdgcn_target "amdgcn-amd-amdhsa--gfx950"')
    e(".text")
    e(f".globl {NAME}_kernel")
    e(".p2align 8")
    e(f".type {NAME}_kernel,@function")
    e(f"{NAME}_kernel:")
    e("    s_load_dwordx8 s[4:11], s[0:1], 0          ; q k v e")
    ts(0)
    if cpf == 1:
        e("    s_getpc_b64 s[20:21]")
        e("L_pc:")
        e("    s_movk_i32 s23, 0xe000")
        e("    s_movk_i32 s22, 0xc00" if tight else "    s_mov_b32 s22, L_end - L_pc")
        e("    v_lshl_add_u32 v3, v0, 7, s23")
        e("    s_mov_b32 s23, 0x20000")
        e("    buffer_load_dword v63, v3, s[20:23], 0 offen")
    elif cpf == 2:
        e("    s_getpc_b64 s[20:21]")
        e("    v_subrev_u32 v3, 64, v0")
        e("    v_cmp_gt_u32 vcc, 24, v3")
        e("    v_lshlrev_b32 v4, 7, v3")
        e("    v_mov_b32 v5, 0")
        e("    s_and_saveexec_b64 s[22:23], vcc")
        e("    s_cbranch_execz L_nopf")
        e("    v_lshl_add_u64 v[4:5], v[4:5], 0, s[20:21]")
        e("    global_load_dword v63, v[4:5], off")
        e("L_nopf:")
        e("    s_mov_b64 exec, s[22:23]")
    e(f"    v_readfirstlane_b32 s{sW}, v0               ; 64 * wave")
    e("    v_and_b32 v2, 48, v0")
    e("    v_lshlrev_b32 v1, 3, v0")
    wide = tight and cpf == 2
    if wide:
        e("    s_load_dwordx4 s[12:15], s[0:1], 32        ; f out")
    e("    s_cmp_ge_u32 s2, 0x100" if wide else "    s_cmpk_ge_u32 s2, 0x100")
    e("    s_cbranch_scc1 L_end")
    e("    s_mul_i32 s32, s2, 786432")
    e(f"    s_cmp_lg_u32 s{sW}, 0")
    e("    s_cbranch_scc1 L_cons")
    sI, sTh, sMk, sX, sInc, sN = 49, 48, 50, 51, 52, 53
    e("; ---------------- loader")
    e("    v_xor_b32 v1, v1, v2")
    e(f"    s_mov_b32 s{sD+2}, 786432")
    if oob:
        assert stamp
        e("    v_add_u32 v1, 0x800000, v1")
    e("    v_lshlrev_b32 v1, 1, v1")
    e(f"    s_mov_b32 s{sD+3}, s23" if tight and cpf == 1 else f"    s_mov_b32 s{sD+3}, 0x20000")
    e(f"    s_movk_i32 s{sU[1]}, 0x1000")
    e(f"    s_lshl_b32 s{sU[2]}, s{sU[1]}, 3")
    e(f"    s_mov_b32 m0, 0")
    e("    s_waitcnt lgkmcnt(0)")
    ts(1)
    e(f"    s_add_u32 s{sD}, s6, s32")
    e(f"    s_addc_u32 s{sD+1}, s7, 0")
    e("L_first:                                       ; group 0: ring offset = memory offset, m0 serves as both")
    for k, x in enumerate((sU[1], sU[2], sU[1], sU[2])):
        e(f"    buffer_load_dwordx4 v1, s[{sD}:{sD+3}], m0 offen nt lds")
        e(f"    s_xor_b32 m0, m0, s{x}")
        if k < 3: e("    s_nop 0")
    e("    s_addk_i32 m0, 0x400")
    e(f"    s_cmp_lg_u32 m0, s{sU[1]}")
    e("    s_cbranch_scc1 L_first")
    ts(2)
    if clk: e("    s_memtime s[56:57]")
    if stamp:
        e(f"    s_load_dwordx2 s[60:61], s[0:1], 56")
    e(f"    s_mov_b32 s{sQi}, 1")
    e(f"    s_movk_i32 s{sU[0]}, 0x2000")
    e(f"    s_movk_i32 s{sU[1]}, 0x3000")
    e(f"    s_add_u32 s{sU[3]}, s{sU[2]}, s{sU[1]}")
    e(f"    s_add_u32 s{sU[2]}, s{sU[2]}, s{sU[0]}")
    e(f"    s_mov_b64 s[{mU[0]}:{mU[1]}], s[{sU[0]}:{sU[1]}]")
    e(f"    s_mov_b64 s[{mU[2]}:{mU[3]}], s[{sU[2]}:{sU[3]}]")
    e(f"    s_mov_b32 s{sMk}, 0x00c0000f")
    e(f"    s_mov_b32 s{sTh}, {enc(Wbeg):#x}")
    e(f"    v_mov_b32 v2, {COFF}")
    if tight and not wide:
        assert W == Wbeg
        e(f"    v_mov_b32 v3, s{sTh}")
    else:
        e(f"    v_mov_b32 v3, {enc(W):#x}")
    e(f"    v_mov_b32 v4, v1")
    e(f"    ds_write_b32 v2, v3")
    if lastc: e(f"    s_mov_b32 s54, 0x01010101")
    if unr:
        assert not lastc and not qe
        e("L_lgrp:")
        for pos in range(16):
            u, i = pos & 3, pos >> 2
            e(f"    s_mov_b32 m0, s{mU[u]}")
            if pre:
                e(f"    s_waitcnt vmcnt({pre})")
            e(f"L_poll{pos}:")
            e(f"    s_getreg_b32 s{sX}, hwreg(HW_REG_IB_STS)")
            e(f"    s_and_b32 s{sX}, s{sX}, s{sMk}")
            e(f"    s_cmp_ge_u32 s{sX}, s{sTh}")
            e(f"    s_cbranch_scc1 L_poll{pos}")
            e(f"    buffer_load_dwordx4 v1, s[{sD}:{sD+3}], s{sU[u]} offen offset:{i*1024} nt lds")
            if dn and pos < 12:
                assert stamp
                e(f"    s_nop {min(dn,16)-1}")
                if dn > 16: e(f"    s_nop {dn-17}")
            if dn > 4 and pos >= 12:
                e(f"    s_nop {min(dn-4,16)-1}")
            if pos == bp - 1:
                e(f"    s_cmp_lt_u32 s{sQi}, 2")
                e(f"    s_cbranch_scc1 L_lnobar")
                e(f"    s_waitcnt vmcnt({16 + bp})")
                e("    s_barrier")
                e("L_lnobar:")
            if pos == 8:
                e(f"    ds_read_b32 v3, v2")
            if pos == 10:
                e(f"    s_add_u32 s{sQi}, s{sQi}, 1")
                e(f"    s_and_b32 s{sT}, s{sQi}, 3")
                e(f"    s_cselect_b32 s{sT}, 8, 40")
                e(f"    s_lshl_b32 s{sT}, s{sT}, 10")
            if pos == 11:
                e(f"    s_waitcnt lgkmcnt(0)")
                e(f"    v_readfirstlane_b32 s{sTh}, v3")
            if pos >= 12:
                e(f"    s_add_u32 s{sU[u]}, s{sU[u]}, s{sT}")
                e(f"    s_add_u32 s{mU[u]}, s{mU[u]}, s{sT}")
                e(f"    s_sub_u32 s37, s{mU[u]}, {RB}")
                e(f"    s_cselect_b32 s{mU[u]}, s{mU[u]}, s37")
        assert bp <= 10
    else:
        if lal >= 0:
            e(".p2align 6")
            for _ in range(((lal - 8 - 4 * (keep or lastc)) % 64) // 4):
                e("    s_nop 0")
        e("L_lgrp:")
        e(f"    s_mov_b32 s{sI}, 0")
        if lastc: e(f"    s_mov_b32 s{sInc}, s54")
        elif keep: e(f"    s_mov_b32 s{sInc}, 0")
        e(f"    v_mov_b32 v1, v4")
        e("L_lquad:")
        for u in range(4):
            e(f"    s_add_u32 m0, s{mU[u]}, s{sI}")
            if u % gran == 0:
                e(f"L_poll{u}:                                       ; wait until fewer than W loads are in flight")
                e(f"    s_getreg_b32 s{sX}, hwreg(HW_REG_IB_STS)")
                e(f"    s_and_b32 s{sX}, s{sX}, s{sMk}")
                e(f"    s_cmp_ge_u32 s{sX}, s{sTh}")
                e(f"    s_cbranch_scc1 L_poll{u}")
            else:
                e("    s_nop 0")
            e(f"    buffer_load_dwordx4 v1, s[{sD}:{sD+3}], s{sU[u]} offen nt lds")
            if dn:
                assert stamp
                e(f"    s_nop {dn-1}")
        if lastc:
            e(f"    s_and_b32 s{sX}, s{sInc}, 63")
            e(f"    s_lshl_b32 s{sX}, s{sX}, 10")
            e(f"    s_add_u32 s{sI}, s{sI}, s{sX}")
            e(f"    v_add_u32 v1, s{sX}, v1")
            e(f"    s_lshr_b32 s{sInc}, s{sInc}, 8")
            e(f"    s_cbranch_scc0 L_lgend")
            e(f"    s_bitcmp0_b32 s{sInc}, {8 * (3 - bq)}")
            e(f"    s_cbranch_scc1 L_lquad")
            if bq > 1:
                e(f"    s_lshr_b32 s{sX}, s{sInc}, {8 * (4 - bq)}")
                e(f"    s_cbranch_scc1 L_lquad")
        else:
            e(f"    v_add_u32 v1, 0x400, v1")
            e(f"    s_addk_i32 s{sI}, 0x400")
            e(f"    s_cmpk_eq_u32 s{sI}, 0x1000")
            e(f"    s_cbranch_scc1 L_lgend")
            e(f"    s_cmpk_lg_u32 s{sI}, {bq * 0x400:#x}")
            e(f"    s_cbranch_scc1 L_lquad")
        e(f"    ds_read_b32 v3, v2")
        if qe:
            e(f"    s_sub_u32 s{sX}, s{sQi}, 2")
            e(f"    s_cmp_ge_u32 s{sX}, {qe - 2}")
        else:
            e(f"    s_cmp_lt_u32 s{sQi}, 2")
        e(f"    s_cbranch_scc1 L_lquad")
        e(f"    s_waitcnt vmcnt({16 + 4 * bq})")
        e("    s_barrier")
        e(f"    s_branch L_lquad")
        e("L_lgend:")
        if qe:
            e(f"    s_cmp_lt_u32 s{sQi}, {qe}")
            e(f"    s_cbranch_scc1 L_lgend2")
            e(f"    s_waitcnt vmcnt(32)")
            e("    s_barrier")
            e("L_lgend2:")
        e(f"    s_add_u32 s{sQi}, s{sQi}, 1")
        e(f"    s_and_b32 s{sT}, s{sQi}, 3")
        e(f"    s_cselect_b32 s{sT}, 8, 40")
        e(f"    s_lshl_b32 s{sT}, s{sT}, 10")
        e(f"    s_waitcnt lgkmcnt(0)")
        e(f"    v_readfirstlane_b32 s{sTh}, v3")
        for u in range(4):
            e(f"    s_add_u32 s{sU[u]}, s{sU[u]}, s{sT}")
            e(f"    s_add_u32 s{mU[u]}, s{mU[u]}, s{sT}")
            e(f"    s_sub_u32 s37, s{mU[u]}, {RB}")
            e(f"    s_cselect_b32 s{mU[u]}, s{mU[u]}, s37")
    e(f"    s_cmp_eq_u32 s{sQi}, 48")
    e(f"    s_cbranch_scc1 L_lswitch")
    e(f"    s_cmp_lt_u32 s{sQi}, 95")
    e(f"    s_cbranch_scc1 L_lgrp")
    if lastc:
        pos = ((7 * 192 + 152) % R)
        assert pos + 40 <= R
        e(f"    s_cmp_lg_u32 s{sQi}, 95")
        e(f"    s_cbranch_scc1 L_ldone")
        for u in range(1, 4):
            e(f"    s_add_u32 s{sU[u]}, s{sU[0]}, {u*1024}")
            e(f"    s_add_u32 s{mU[u]}, s{mU[0]}, {u*1024}")
        e(f"    s_mov_b32 s54, 0x01041c04")
        e(f"    s_mov_b32 s{sTh}, {enc(32):#x}")
        e(f"    s_branch L_lgrp")
        e("L_ldone:")
    else:
        e(f"    v_mov_b32 v1, v4")
        order = [(0, i) for i in range(4)] + [(1, i) for i in range(4)] + [(u, i) for i in range(4) for u in (2, 3)]
        for pos, (u, i) in enumerate(order):
            e(f"    s_mov_b32 m0, s{mU[u]}")
            e(f"    s_waitcnt vmcnt({16 + lb if pos == lb else 31})")
            if pos == lb: e("    s_barrier")
            e(f"    buffer_load_dwordx4 v1, s[{sD}:{sD+3}], s{sU[u]} offen offset:{i*1024} nt lds")
    for n in (16, 12, 8):
        e(f"    s_waitcnt vmcnt({n})")
        e("    s_barrier")
    e("    s_waitcnt vmcnt(0)")
    ts(5)
    e("    s_barrier")
    if stamp:
        for k in (3, 4):
            e(f"    s_mov_b32 s{sTS+2*k}, s{sTS}")
        if clk:
            e("    s_memtime s[58:59]")
            e("    s_waitcnt lgkmcnt(0)")
            e(f"    s_sub_u32 s{sTS+6}, s58, s56")
        e("    s_branch L_fin")
    else:
        e("    s_endpgm")
    e("L_lswitch:                                     ; K issued: switch to V")
    e(f"    s_add_u32 s{sD}, s8, s32")
    e(f"    s_addc_u32 s{sD+1}, s9, 0")
    for u in range(4):
        e(f"    s_sub_u32 s{sU[u]}, s{sU[u]}, s{sD+2}")
    e(f"    s_branch L_lgrp")
    align()
    e("; ---------------- balancer")
    e("L_ctl:")
    e("    s_load_dwordx2 s[16:17], s[0:1], 48        ; d_debug")
    e("    s_mov_b32 s18, 256")
    e("    s_mov_b32 s19, 0x20000")
    e("    v_and_b32 v0, 63, v0")
    e("    v_lshlrev_b32 v1, 12, v0")
    e("    s_getreg_b32 s20, hwreg(HW_REG_HW_ID, 8, 7)")
    e("    v_lshlrev_b32 v9, 4, v0")
    e("    s_lshr_b32 s21, s20, 5")
    e("    s_and_b32 s20, s20, 15")
    e("    s_lshl_b32 s21, s21, 4")
    e("    s_or_b32 s20, s20, s21")
    e(f"    v_mov_b32 v4, {COFF}")
    e("    s_mov_b32 s21, 4")
    e("    v_mov_b32 v5, 0")
    e("    v_mov_b32 v8, 0")
    e("    s_mul_i32 s22, s2, 3072")
    e("    s_mov_b32 s26, 3072")
    e("    s_mov_b32 s27, 0x20000")
    e(f"    s_mov_b32 m0, {QOFF}")
    e("    s_waitcnt lgkmcnt(0)")
    e("    s_add_u32 s24, s4, s22")
    e("    s_addc_u32 s25, s5, 0")
    e("    s_barrier")
    for k in range(3):
        e(f"    buffer_load_dwordx4 v9, s[24:27], 0 offen offset:{k*1024} nt lds   ; q -> LDS")
    e("    s_barrier")
    e("    s_barrier")
    e("    s_waitcnt vmcnt(0)")
    def cbody(vr):
        e("    s_barrier")
        e("    s_waitcnt vmcnt(2)")
        e(f"    s_sub_u32 s22, s21, {2 + rng}")
        e("    v_mov_b32 v3, s21")
        e(f"    v_subrev_u32 v6, s22, v{vr}")
        e(f"    v_cmp_ne_u32 s[30:31], 0, v{vr}")
        e(f"    v_cmp_gt_u32 vcc, {2*rng}, v6")
        e(f"    v_subrev_u32 v6, {rng}, v6")
        e("    buffer_store_byte v3, v1, s[16:19], s20 offen")
        e("    s_and_b64 vcc, vcc, s[30:31]")
        e(f"    buffer_load_ubyte v{vr}, v0, s[16:19], 0 offen sc1")
        e("    v_cndmask_b32 v6, 0, v6, vcc")
        for ctrl in ("row_shr:1", "row_shr:2", "row_shr:4", "row_shr:8"):
            e("    s_nop 1")
            e(f"    v_add_u32_dpp v6, v6, v6 {ctrl} row_mask:0xf bank_mask:0xf bound_ctrl:1")
        e("    s_add_u32 s21, s21, 1")
        e("    v_readlane_b32 s22, v6, 15")
        e("    v_readlane_b32 s23, v6, 31")
        e("    v_readlane_b32 s28, v6, 47")
        e("    v_readlane_b32 s29, v6, 63")
        e("    s_add_i32 s22, s22, s23")
        e("    s_add_i32 s28, s28, s29")
        e("    s_add_i32 s22, s22, s28")
        e(f"    s_add_i32 s22, s22, {cb}")
        e(f"    s_ashr_i32 s22, s22, {sh}")
        e(f"    s_add_i32 s22, s22, {W}")
        e(f"    s_max_i32 s22, s22, {wmin}")
        e(f"    s_min_i32 s22, s22, {wmax}")
        e(f"    s_cmp_lt_u32 s21, 8")
        e(f"    s_cselect_b32 s22, {W}, s22")
        for item in ramp.split(","):
            if item:
                q0, add = item.split(":")
                e(f"    s_cmp_ge_u32 s21, {q0}")
                e(f"    s_cselect_b32 s23, {add}, 0")
                e(f"    s_add_i32 s22, s22, s23")
        e(f"    s_min_i32 s22, s22, 32")
        e(f"    s_and_b32 s23, s22, 15")
        e(f"    s_lshr_b32 s22, s22, 4")
        e(f"    s_lshl_b32 s22, s22, 22")
        e(f"    s_or_b32 s22, s22, s23")
        e("    v_mov_b32 v7, s22")
        e("    ds_write_b32 v4, v7")
    e("L_cgrp:")
    cbody(5)
    cbody(8)
    e(f"    s_cmp_lt_u32 s21, {cend}")
    e("    s_cbranch_scc1 L_cgrp")
    e("    s_endpgm")
    sC, sP, sP0, sEo, sEn, sFl, sSeq, sB, sT2 = 33, 34, 37, 38, 39, 40, 42, 45, 46
    sSC, sL2E, sMSK, sER, sEs, sBi = 47, 48, 49, 51, 52, 53
    vA = [4, 5, 6, 7]; vB = [8, 9, 10, 11]; vE0, vE, vL16, vQo, vSR = 12, 13, 14, 15, 3
    vP, vQD, ACC, TT, EE = 16, 20, 28, 44, 60
    NV = 64
    align()
    e("; ---------------- consumers")
    e("L_cons:")
    if not wide:
        e("    s_load_dwordx4 s[12:15], s[0:1], 32        ; f out")
    if stamp:
        e(f"    s_load_dwordx2 s[60:61], s[0:1], 56")
    e(f"    s_cmp_eq_u32 s{sW}, 256")
    e(f"    s_cbranch_scc1 L_ctl")
    e(f"    s_lshr_b32 s{sC}, s{sW}, 6")
    e(f"    s_sub_u32 s{sC}, s{sC}, 1")
    e("    v_and_b32 v0, 63, v0")
    e(f"    v_lshlrev_b32 v{vL16}, 4, v0")
    e("    v_and_b32 v1, 15, v0")
    e("    v_lshrrev_b32 v2, 4, v0                    ; g")
    e(f"    v_mul_u32_u24 v{vQo}, 0x180, v1")
    e(f"    s_lshl_b32 s{sT}, s{sC}, 7")
    e(f"    v_lshl_add_u32 v{vQo}, v2, 3, v{vQo}")
    e(f"    v_add_u32 v{vQo}, s{sT}, v{vQo}")
    e(f"    v_mul_u32_u24 v{vE0}, 0x410, v1")
    e(f"    v_lshl_add_u32 v{vE0}, v2, 3, v{vE0}")
    e(f"    v_lshrrev_b32 v{vA[1]}, 2, v0")
    e(f"    v_mul_u32_u24 v{vA[1]}, 3, v{vA[1]}")
    e(f"    v_add_u32 v{vA[1]}, s{sC}, v{vA[1]}")
    e(f"    v_bfe_u32 v{vA[2]}, v{vA[1]}, 1, 2")
    e(f"    v_lshlrev_b32 v{vA[2]}, 5, v{vA[2]}")
    e(f"    v_lshl_add_u32 v{vA[2]}, v{vA[1]}, 7, v{vA[2]}")
    e(f"    v_and_b32 v{vA[3]}, 3, v0")
    e(f"    v_lshl_add_u32 v{vA[0]}, v{vA[3]}, 3, v{vA[2]}")
    for t in range(1, 4):
        e(f"    v_xor_b32 v{vA[t]}, {32*t}, v{vA[0]}")
    e(f"    v_add_u32 v{vSR}, {SOFF}, v{vL16}")
    e(f"    v_lshlrev_b32 v2, 2, v2")
    e(f"    v_sub_u32 v2, v1, v2")
    e(f"    v_mov_b32 v{TT}, 0x3f80")
    e(f"    v_mov_b32 v{TT+1}, 0x3f800000")
    e(f"    v_mov_b32 v{vP}, 0")
    e(f"    v_mov_b32 v{vP+1}, 0")
    for k in range(4):
        e(f"    v_cmp_eq_u32 vcc, {k}, v2")
        e(f"    s_nop 1")
        e(f"    v_cndmask_b32 v{vP+(k>>1)}, v{vP+(k>>1)}, v{TT+(k&1)}, vcc")
    e(f"    s_mov_b32 s{sP}, 0")
    e(f"    s_mov_b32 s{sP0}, 0")
    e(f"    s_mov_b32 s{sEo}, {EOFF}")
    e(f"    s_mov_b32 s{sEn}, {EOFF+ES}")
    for r in range(16):
        e(f"    v_mov_b32 v{ACC+r}, 0")
    e(f"    s_mov_b32 s{sE+2}, 65536")
    e(f"    s_mov_b32 s{sE+3}, 0x20000")
    e(f"    s_mul_i32 s{sT}, s{sC}, 1040")
    e(f"    s_add_u32 m0, s{sT}, s{sEo}")
    e(f"    s_lshl_b32 s{sB}, s{sC}, 12")
    e("    s_mul_i32 s32, s2, 3072")
    e(f"    s_mov_b32 s{sO+2}, 0")
    e(f"    s_mov_b32 s{sO+3}, 0x20000")
    e("    s_waitcnt lgkmcnt(0)")
    ts(1)
    e(f"    s_mov_b32 s{sE}, s10")
    e(f"    s_mov_b32 s{sE+1}, s11")
    e(f"    s_add_u32 s{sO}, s14, s32")
    e(f"    s_addc_u32 s{sO+1}, s15, 0")
    if e0late:
        e("    s_barrier")
    e("L_e0:                                          ; period-0 projection rows c, c+3, ...")
    e(f"    buffer_load_dwordx4 v{vL16}, s[{sE}:{sE+3}], s{sB} offen lds")
    e(f"    s_addk_i32 m0, {3*1040}")
    e(f"    s_addk_i32 s{sB}, {3*4096}")
    e(f"    s_cmp_lt_u32 s{sB}, s{sE+2}")
    e(f"    s_cbranch_scc1 L_e0")
    e("L_period:")
    e(f"    s_mov_b32 s{sSeq}, {SEQ & 0xffffffff:#x}")
    e(f"    s_mov_b32 s{sSeq+1}, {SEQ >> 32:#x}")
    e(f"    s_mov_b32 s{sFl}, {FL:#x}")
    e(f"    s_mov_b32 s{sER}, s{sC}")
    e(f"    s_mov_b32 s{sBi}, -1")
    e(f"    s_add_u32 s{sEs}, s{sP}, 1")
    e(f"    s_and_b32 s{sEs}, s{sEs}, 3")
    e(f"    s_cbranch_scc1 L_nosw")
    e(f"    s_mov_b32 s{sE}, s12")
    e(f"    s_mov_b32 s{sE+1}, s13")
    e("L_nosw:")
    e(f"    s_lshl_b32 s{sEs}, s{sEs}, 10")
    e(f"    s_cmp_eq_u32 s{sP}, 7")
    e(f"    s_cselect_b32 s{sER}, 16, s{sER}")
    e(f"    s_cselect_b32 s{sFl}, {FL_LAST:#x}, s{sFl}")
    if e0late:
        assert first[:3] == [1, 0, 1]
        e(f"    s_cmp_eq_u32 s{sP}, 0")
        e(f"    s_cselect_b32 s{sFl}, {FL & ~4:#x}, s{sFl}")
    e("    s_barrier")
    if stamp:
        e(f"    s_cmp_lg_u32 s{sP}, 0")
        e(f"    s_cbranch_scc1 L_nots2")
        ts(2)
        e("L_nots2:")
    e(f"    s_cmp_eq_u32 s{sP}, 3")
    e(f"    s_cbranch_scc1 L_qread")
    if defer:
        e(f"    s_cmp_eq_u32 s{sP}, 4")
        e(f"    s_cbranch_scc1 L_epi")
    e(f"    s_cmp_eq_u32 s{sP}, {5 if defer else 4}")
    e(f"    s_cbranch_scc1 L_softmax")
    e("L_q0done:")
    e("    s_waitcnt vmcnt(0)")
    e("L_block:")
    e(f"    s_and_b32 s{sB}, s{sSeq}, 15")
    e(f"    s_lshr_b64 s[{sSeq}:{sSeq+1}], s[{sSeq}:{sSeq+1}], 4")
    e(f"    s_lshl_b32 s{sT2}, s{sB}, 6")
    e(f"    s_add_u32 s{sT2}, s{sT2}, s{sEo}")
    e(f"    s_mul_i32 s{sB}, s{sB}, 12288")
    e(f"    v_add_u32 v{vE}, s{sT2}, v{vE0}")
    e(f"    s_add_u32 s{sB}, s{sB}, s{sP0}")
    for _ in range(2):
        e(f"    s_sub_u32 s{sT}, s{sB}, {RB}")
        e(f"    s_cselect_b32 s{sB}, s{sB}, s{sT}")
    for t in range(4):
        e(f"    v_add_u32 v{vB[t]}, s{sB}, v{vA[t]}")
    e(f"    s_bitcmp0_b32 s{sFl}, 0")
    e(f"    s_cbranch_scc1 L_nobarc")
    e("    s_barrier")
    e("L_nobarc:")
    e(f"    ds_read_b64 v[{EE}:{EE+1}], v{vE}")
    e(f"    ds_read_b64 v[{EE+2}:{EE+3}], v{vE} offset:32")
    for t in range(4):
        e(f"    ds_read_b64_tr_b16 v[{TT+4*t}:{TT+4*t+1}], v{vB[t]}")
        e(f"    ds_read_b64_tr_b16 v[{TT+4*t+2}:{TT+4*t+3}], v{vB[t]} offset:6144")
    e(f"    s_add_u32 s{sBi}, s{sBi}, 1")
    e(f"    s_cmp_lg_u32 s{sER}, s{sBi}")
    e(f"    s_cbranch_scc1 L_noe")
    e(f"    s_mul_i32 s{sT}, s{sER}, 1040")
    e(f"    s_add_u32 m0, s{sT}, s{sEn}")
    e(f"    s_lshl_b32 s{sT}, s{sER}, 12")
    e(f"    s_add_u32 s{sT}, s{sT}, s{sEs}")
    e(f"    s_add_u32 s{sER}, s{sER}, 3")
    e(f"    buffer_load_dwordx4 v{vL16}, s[{sE}:{sE+3}], s{sT} offen lds")
    e("L_noe:")
    e(f"    s_lshr_b32 s{sFl}, s{sFl}, 1")
    e(f"    s_cmp_lg_u32 s{sFl}, 1")
    for t in range(4):
        e(f"    s_waitcnt lgkmcnt({6-2*t})")
        e(f"    v_mfma_f32_16x16x32_bf16 v[{ACC+4*t}:{ACC+4*t+3}], v[{EE}:{EE+3}], v[{TT+4*t}:{TT+4*t+3}], v[{ACC+4*t}:{ACC+4*t+3}]")
    e(f"    s_cbranch_scc1 L_block")
    e(f"    s_add_u32 s{sP}, s{sP}, 1")
    e(f"    s_and_b32 s{sT}, s{sP}, {7 if defer else 3}")
    e(f"    s_cbranch_scc1 L_nextp")
    A0 = TT; D0 = ACC; R0 = TT + 8
    e("L_epi:")
    if stamp:
        e(f"    s_cmp_lg_u32 s{sP}, 4")
        e(f"    s_cbranch_scc1 L_nots3")
        ts(3)
        e("L_nots3:")
    for k in range(8):
        e(f"    v_cvt_pk_bf16_f32 v{A0+k}, v{ACC+2*k}, v{ACC+2*k+1}")
    e(f"    s_cmp_eq_u32 s{sP}, 8")
    for t in range(4):
        e(f"    v_mfma_f32_16x16x16_bf16 v[{D0+4*t}:{D0+4*t+3}], v[{A0+2*t}:{A0+2*t+1}], v[{vP}:{vP+1}], 0")
    e("    s_nop 4")
    for t in range(4):
        e(f"    v_cvt_pk_bf16_f32 v{R0+2*t}, v{D0+4*t}, v{D0+4*t+1}")
        e(f"    v_cvt_pk_bf16_f32 v{R0+2*t+1}, v{D0+4*t+2}, v{D0+4*t+3}")
        e(f"    buffer_store_dwordx2 v[{R0+2*t}:{R0+2*t+1}], v{vQo}, s[{sO}:{sO+3}], 0 offen offset:{32*t}")
    e(f"    s_cbranch_scc1 L_fin")
    S0 = EE
    e(f"    v_mfma_f32_16x16x32_bf16 v[{S0}:{S0+3}], v[{R0}:{R0+3}], v[{vQD}:{vQD+3}], 0")
    e(f"    v_mfma_f32_16x16x32_bf16 v[{S0}:{S0+3}], v[{R0+4}:{R0+7}], v[{vQD+4}:{vQD+7}], v[{S0}:{S0+3}]")
    e(f"    s_lshl_b32 s{sT}, s{sC}, 10")
    e(f"    v_add_u32 v{vE}, s{sT}, v{vSR}")
    for r in range(16):
        e(f"    v_mov_b32 v{ACC+r}, 0")
    e(f"    ds_write_b128 v{vE}, v[{S0}:{S0+3}]")
    e(f"    s_mov_b32 s{sO+2}, 3072")
    e("    s_waitcnt lgkmcnt(0)")
    if defer:
        e("    s_waitcnt vmcnt(4)")
        e(f"    s_branch L_block")
    e("L_nextp:")
    e(f"    s_add_u32 s{sP0}, s{sP0}, {196608 - RB}")
    e(f"    s_sub_u32 s{sT}, s{sP0}, {RB}")
    e(f"    s_cselect_b32 s{sP0}, s{sP0}, s{sT}")
    e(f"    s_mov_b32 s{sT}, s{sEo}")
    e(f"    s_mov_b32 s{sEo}, s{sEn}")
    e(f"    s_mov_b32 s{sEn}, s{sT}")
    e(f"    s_branch L_period")
    e("L_qread:")
    e(f"    v_and_b32 v1, 7, v0")
    e(f"    v_mul_u32_u24 v1, 0x180, v1")
    e(f"    v_lshrrev_b32 v2, 4, v0")
    e(f"    v_lshl_add_u32 v1, v2, 3, v1")
    e(f"    s_lshl_b32 s{sT}, s{sC}, 7")
    e(f"    s_add_u32 s{sT}, s{sT}, {QOFF}")
    e(f"    v_add_u32 v1, s{sT}, v1")
    for t in range(4):
        e(f"    ds_read_b64 v[{vQD+2*t}:{vQD+2*t+1}], v1 offset:{32*t}")
    e("    s_waitcnt lgkmcnt(0)")
    e(f"    s_branch L_q0done")
    e("L_softmax:")
    X = TT; Y = TT + 12
    for m in range(3):
        e(f"    ds_read_b128 v[{X+4*m}:{X+4*m+3}], v{vSR} offset:{m*1024}")
    e(f"    s_mov_b32 s{sSC}, 0x3d93cd3a                ; 192^-0.5")
    e(f"    s_mov_b32 s{sL2E}, 0x3fb8aa3b                ; log2(e)")
    e(f"    s_mov_b32 s{sMSK}, 0xffff0000")
    for m in range(1, 3):
        e(f"    s_waitcnt lgkmcnt({2-m})")
        for k in range(4):
            e(f"    v_add_f32 v{X+k}, v{X+k}, v{X+4*m+k}")
    def round4():
        e(f"    v_cvt_pk_bf16_f32 v{Y}, v{X}, v{X+1}")
        e(f"    v_cvt_pk_bf16_f32 v{Y+1}, v{X+2}, v{X+3}")
        e(f"    v_lshlrev_b32 v{X}, 16, v{Y}")
        e(f"    v_and_b32 v{X+1}, s{sMSK}, v{Y}")
        e(f"    v_lshlrev_b32 v{X+2}, 16, v{Y+1}")
        e(f"    v_and_b32 v{X+3}, s{sMSK}, v{Y+1}")
    round4()
    for i in range(4):
        e(f"    v_mul_f32 v{X+i}, s{sSC}, v{X+i}")
    round4()
    def allreduce(op):
        for sw in ("v_permlane16_swap_b32", "v_permlane32_swap_b32"):
            e(f"    v_mov_b32 v{Y+1}, v{Y}")
            e(f"    s_nop 1")
            e(f"    {sw} v{Y}, v{Y+1}")
            e(f"    s_nop 1")
            e(f"    {op} v{Y}, v{Y}, v{Y+1}")
    e(f"    v_max3_f32 v{Y}, v{X}, v{X+1}, v{X+2}")
    e(f"    v_max_f32 v{Y}, v{Y}, v{X+3}")
    allreduce("v_max_f32")
    for i in range(4):
        e(f"    v_sub_f32 v{X+i}, v{X+i}, v{Y}")
    for i in range(4):
        e(f"    v_mul_f32 v{X+i}, s{sL2E}, v{X+i}")
    for i in range(4):
        e(f"    v_exp_f32 v{X+i}, v{X+i}")
    e("    s_nop 0")
    e(f"    v_add_f32 v{Y}, v{X}, v{X+1}")
    e(f"    v_add_f32 v{Y+2}, v{X+2}, v{X+3}")
    e(f"    v_add_f32 v{Y}, v{Y}, v{Y+2}")
    allreduce("v_add_f32")
    e(f"    v_rcp_f32 v{Y}, v{Y}")
    e("    s_nop 0")
    for i in range(4):
        e(f"    v_mul_f32 v{X+i}, v{X+i}, v{Y}")
    e(f"    v_cvt_pk_bf16_f32 v{vP}, v{X}, v{X+1}")
    e(f"    v_cvt_pk_bf16_f32 v{vP+1}, v{X+2}, v{X+3}")
    ts(4)
    e(f"    s_branch L_q0done")
    e("L_fin:")
    if stamp:
        e(f"    s_cmp_eq_u32 s{sW}, 0")
        e(f"    s_cbranch_scc1 L_fin2")
        e(f"    s_mov_b32 s{sTS+10}, s{sTS}")
        e("L_fin2:")
        e("    s_waitcnt vmcnt(0)")
        ts(6)
        e(f"    s_getreg_b32 s{sTS+14}, hwreg(HW_REG_XCC_ID)")
        e(f"    s_getreg_b32 s{sT}, hwreg(HW_REG_HW_ID)")
        e(f"    s_and_b32 s{sTS+14}, s{sTS+14}, 15")
        e(f"    s_lshl_b32 s{sT}, s{sT}, 4")
        e(f"    s_or_b32 s{sTS+14}, s{sTS+14}, s{sT}")
        e(f"    s_mov_b32 s62, 0x100000")
        e(f"    s_mov_b32 s63, 0x20000")
        e("    s_waitcnt lgkmcnt(0)")
        for k in range(8):
            e(f"    v_mov_b32 v{ACC+k}, s{sTS+2*k}")
        e(f"    s_mul_i32 s{sT}, s2, 160")
        e(f"    s_lshr_b32 s{sW}, s{sW}, 1")
        e(f"    s_add_u32 s{sT}, s{sT}, s{sW}")
        e(f"    v_mov_b32 v2, s{sT}")
        e(f"    buffer_store_dwordx4 v[{ACC}:{ACC+3}], v2, s[60:63], 0 offen")
        e(f"    buffer_store_dwordx4 v[{ACC+4}:{ACC+7}], v2, s[60:63], 0 offen offset:16")
    e("L_end:")
    e("    s_endpgm")
    e('.section .rodata,"a"')
    e(".p2align 6")
    e(f".amdhsa_kernel {NAME}_kernel")
    e(f"  .amdhsa_next_free_vgpr {NV}")
    e(f"  .amdhsa_next_free_sgpr {80 if stamp else 56}")
    e(f"  .amdhsa_accum_offset {(NV+3)//4*4}")
    e("  .amdhsa_group_segment_fixed_size 0")
    e("  .amdhsa_kernarg_size 64")
    e("  .amdhsa_user_sgpr_count 2")
    e("  .amdhsa_user_sgpr_kernarg_segment_ptr 1")
    e("  .amdhsa_system_sgpr_workgroup_id_x 1")
    e("  .amdhsa_float_denorm_mode_32 3")
    e(".end_amdhsa_kernel")
    return "\n".join(L) + "\n"

if __name__ == "__main__":
    ap = argparse.ArgumentParser()
    ap.add_argument("-o", default="-")
    for k, d in dict(W=19, R=120, wmin=16, wmax=24, sh=3, cb=32, al=6, rng=8, bq=1, lastc=0, defer=1, cend=92, Wbeg=19, qe=0, unr=0, bp=4, pre=0, dn=0, clk=0, gran=1, lal=-1, keep=0, oob=0, lb=15, e0late=0, tight=0, cpf=1).items():
        ap.add_argument("--" + k, type=int, default=d)
    ap.add_argument("--ramp", default="89:13")
    ap.add_argument("--stamp", action="store_true")
    a = vars(ap.parse_args()); o = a.pop("o")
    (sys.stdout if o == "-" else open(o, "w")).write(gen(**a))
```

```python
import sys, argparse

NAME = "standalone__low_rank_proj_linformer__sampling"
HEADER = """; Kernarg layout for this problem (64 bytes, ptrs only, base s[0:1]):
"""
DOC = """;
"""

def schedule(W, R):
    def grp(x):
        return 4 * (x // 64) + (x % 32) // 8
    done = [max(grp(x) for x in range(12 * b, 12 * b + 12)) for b in range(128)]
    slack = min(16 * grp(x + R) - (16 * (done[x // 12] + 1) + 15 + W) for x in range(1536 - R))
    assert slack >= 0, slack
    seq = sorted(range(16), key=lambda b: (done[b], b))
    first = [int(i == 0 or done[seq[i]] != done[seq[i - 1]]) for i in range(16)]
    assert sorted(set(done[:16])) == list(range(1, 12))
    return seq, first, slack

def gen(W=19, R=120, wmin=16, wmax=24, sh=3, cb=32, al=6, rng=8, ramp="89:13", bq=1, lastc=0, defer=1, cend=92, Wbeg=19, qe=0, unr=0, bp=4, pre=0, dn=0, clk=0, gran=1, lal=-1, keep=0, oob=0, lb=15, e0late=0, tight=0, cpf=1, jit=0, nend=1, Wend=32, nodrop=1, uo="0123", stamp=False):
    seq, first, slack = schedule(33, R)
    assert seq[-3:] == [12, 13, 15]
    SEQ = sum(b << (4 * i) for i, b in enumerate(seq))
    FL = sum(f << i for i, f in enumerate(first)) | (1 << 16)
    FL_LAST = FL | (7 << 13)
    RB = R * 1024
    ES = 16 * 1040
    EOFF = RB
    SOFF = RB + 2 * ES
    COFF = SOFF + 3072
    QOFF = COFF + 16
    LDS = QOFF + 3072
    assert LDS <= 163840
    L = []; e = L.append
    sTS = 64
    def ts(k):
        if stamp:
            e(f"    s_memrealtime s[{sTS+2*k}:{sTS+2*k+1}]")
    def align():
        if al: e(f".p2align {al}")
    def enc(w):
        return ((w >> 4) << 22) | (w & 15)
    sD, sE, sO = 16, 20, 28
    sW = 3
    sQi, sT = 35, 36
    sU = [40, 41, 42, 43]; mU = [44, 45, 46, 47]
    DU = (0, 4096, 32768, 36864)
    e(HEADER.rstrip())
    e(f"; @launch grid=(256,1,1) block=(320,1,1) lds={LDS}")
    e(DOC.rstrip())
    e('.amdgcn_target "amdgcn-amd-amdhsa--gfx950"')
    e(".text")
    e(f".globl {NAME}_kernel")
    e(".p2align 8")
    e(f".type {NAME}_kernel,@function")
    e(f"{NAME}_kernel:")
    e("    s_load_dwordx8 s[4:11], s[0:1], 0          ; q k v e")
    ts(0)
    if cpf == 1:
        e("    s_getpc_b64 s[20:21]")
        e("L_pc:")
        e("    s_movk_i32 s23, 0xe000")
        e("    s_movk_i32 s22, 0xc00" if tight else "    s_mov_b32 s22, L_end - L_pc")
        e("    v_lshl_add_u32 v3, v0, 7, s23")
        e("    s_mov_b32 s23, 0x20000")
        e("    buffer_load_dword v63, v3, s[20:23], 0 offen")
    elif cpf == 2:
        e("    s_getpc_b64 s[20:21]")
        e("    v_subrev_u32 v3, 64, v0")
        e(f"    v_cmp_gt_u32 vcc, {24 if nend == 1 else 27}, v3")
        e("    v_lshlrev_b32 v4, 7, v3")
        e("    v_mov_b32 v5, 0")
        e("    s_and_saveexec_b64 s[22:23], vcc")
        e("    s_cbranch_execz L_nopf")
        e("    v_lshl_add_u64 v[4:5], v[4:5], 0, s[20:21]")
        e("    global_load_dword v63, v[4:5], off")
        e("L_nopf:")
        e("    s_mov_b64 exec, s[22:23]")
    e(f"    v_readfirstlane_b32 s{sW}, v0               ; 64 * wave")
    e("    v_and_b32 v2, 48, v0")
    e("    v_lshlrev_b32 v1, 3, v0")
    wide = tight and cpf == 2
    if wide:
        e("    s_load_dwordx4 s[12:15], s[0:1], 32        ; f out")
    e("    s_cmp_ge_u32 s2, 0x100" if wide else "    s_cmpk_ge_u32 s2, 0x100")
    e("    s_cbranch_scc1 L_end")
    e("    s_mul_i32 s32, s2, 786432")
    e(f"    s_cmp_lg_u32 s{sW}, 0")
    e("    s_cbranch_scc1 L_cons")
    sI, sTh, sMk, sX, sInc, sN = 49, 48, 50, 51, 52, 53
    e("; ---------------- loader")
    e("    v_xor_b32 v1, v1, v2")
    e(f"    s_mov_b32 s{sD+2}, 786432")
    if oob:
        assert stamp
        e("    v_add_u32 v1, 0x800000, v1")
    e("    v_lshlrev_b32 v1, 1, v1")
    e(f"    s_mov_b32 s{sD+3}, s23" if tight and cpf == 1 else f"    s_mov_b32 s{sD+3}, 0x20000")
    e(f"    s_movk_i32 s{sU[1]}, 0x1000")
    e(f"    s_lshl_b32 s{sU[2]}, s{sU[1]}, 3")
    e(f"    s_mov_b32 m0, 0")
    e("    s_waitcnt lgkmcnt(0)")
    ts(1)
    e(f"    s_add_u32 s{sD}, s6, s32")
    e(f"    s_addc_u32 s{sD+1}, s7, 0")
    e("L_first:                                       ; group 0: ring offset = memory offset, m0 serves as both")
    for k, x in enumerate((sU[1], sU[2], sU[1], sU[2])):
        e(f"    buffer_load_dwordx4 v1, s[{sD}:{sD+3}], m0 offen nt lds")
        e(f"    s_xor_b32 m0, m0, s{x}")
        if k < 3: e("    s_nop 0")
    e("    s_addk_i32 m0, 0x400")
    e(f"    s_cmp_lg_u32 m0, s{sU[1]}")
    e("    s_cbranch_scc1 L_first")
    ts(2)
    if clk: e("    s_memtime s[56:57]")
    if stamp:
        e(f"    s_load_dwordx2 s[60:61], s[0:1], 56")
    e(f"    s_mov_b32 s{sQi}, 1")
    e(f"    s_movk_i32 s{sU[0]}, 0x2000")
    e(f"    s_movk_i32 s{sU[1]}, 0x3000")
    e(f"    s_add_u32 s{sU[3]}, s{sU[2]}, s{sU[1]}")
    e(f"    s_add_u32 s{sU[2]}, s{sU[2]}, s{sU[0]}")
    e(f"    s_mov_b64 s[{mU[0]}:{mU[1]}], s[{sU[0]}:{sU[1]}]")
    e(f"    s_mov_b64 s[{mU[2]}:{mU[3]}], s[{sU[2]}:{sU[3]}]")
    e(f"    s_mov_b32 s{sMk}, 0x00c0000f")
    e(f"    s_mov_b32 s{sTh}, {enc(Wbeg):#x}")
    e(f"    v_mov_b32 v2, {COFF}")
    if tight and not wide:
        assert W == Wbeg
        e(f"    v_mov_b32 v3, s{sTh}")
    else:
        e(f"    v_mov_b32 v3, {enc(W):#x}")
    e(f"    v_mov_b32 v4, v1")
    e(f"    ds_write_b32 v2, v3")
    if lastc: e(f"    s_mov_b32 s54, 0x01010101")
    if unr:
        assert not lastc and not qe
        e("L_lgrp:")
        for pos in range(16):
            u, i = pos & 3, pos >> 2
            e(f"    s_mov_b32 m0, s{mU[u]}")
            if pre:
                e(f"    s_waitcnt vmcnt({pre})")
            e(f"L_poll{pos}:")
            e(f"    s_getreg_b32 s{sX}, hwreg(HW_REG_IB_STS)")
            e(f"    s_and_b32 s{sX}, s{sX}, s{sMk}")
            e(f"    s_cmp_ge_u32 s{sX}, s{sTh}")
            e(f"    s_cbranch_scc1 L_poll{pos}")
            e(f"    buffer_load_dwordx4 v1, s[{sD}:{sD+3}], s{sU[u]} offen offset:{i*1024} nt lds")
            if dn and pos < 12:
                assert stamp
                e(f"    s_nop {min(dn,16)-1}")
                if dn > 16: e(f"    s_nop {dn-17}")
            if dn > 4 and pos >= 12:
                e(f"    s_nop {min(dn-4,16)-1}")
            if pos == bp - 1:
                e(f"    s_cmp_lt_u32 s{sQi}, 2")
                e(f"    s_cbranch_scc1 L_lnobar")
                e(f"    s_waitcnt vmcnt({16 + bp})")
                e("    s_barrier")
                e("L_lnobar:")
            if pos == 8:
                e(f"    ds_read_b32 v3, v2")
            if pos == 10:
                e(f"    s_add_u32 s{sQi}, s{sQi}, 1")
                e(f"    s_and_b32 s{sT}, s{sQi}, 3")
                e(f"    s_cselect_b32 s{sT}, 8, 40")
                e(f"    s_lshl_b32 s{sT}, s{sT}, 10")
            if pos == 11:
                e(f"    s_waitcnt lgkmcnt(0)")
                e(f"    v_readfirstlane_b32 s{sTh}, v3")
            if pos >= 12:
                e(f"    s_add_u32 s{sU[u]}, s{sU[u]}, s{sT}")
                e(f"    s_add_u32 s{mU[u]}, s{mU[u]}, s{sT}")
                e(f"    s_sub_u32 s37, s{mU[u]}, {RB}")
                e(f"    s_cselect_b32 s{mU[u]}, s{mU[u]}, s37")
        assert bp <= 10
    else:
        if lal >= 0:
            e(".p2align 6")
            for _ in range(((lal - 8 - 4 * (keep or lastc)) % 64) // 4):
                e("    s_nop 0")
        e("L_lgrp:")
        e(f"    s_mov_b32 s{sI}, 0")
        if lastc: e(f"    s_mov_b32 s{sInc}, s54")
        elif keep: e(f"    s_mov_b32 s{sInc}, 0")
        e(f"    v_mov_b32 v1, v4")
        e("L_lquad:")
        for u in [int(c) for c in uo]:
            e(f"    s_add_u32 m0, s{mU[u]}, s{sI}")
            if u % gran == 0:
                e(f"L_poll{u}:                                       ; wait until fewer than W loads are in flight")
                e(f"    s_getreg_b32 s{sX}, hwreg(HW_REG_IB_STS)")
                e(f"    s_and_b32 s{sX}, s{sX}, s{sMk}")
                e(f"    s_cmp_ge_u32 s{sX}, s{sTh}")
                e(f"    s_cbranch_scc1 L_poll{u}")
            else:
                e("    s_nop 0")
            e(f"    buffer_load_dwordx4 v1, s[{sD}:{sD+3}], s{sU[u]} offen nt lds")
            if dn:
                assert stamp
                e(f"    s_nop {dn-1}")
        if lastc:
            e(f"    s_and_b32 s{sX}, s{sInc}, 63")
            e(f"    s_lshl_b32 s{sX}, s{sX}, 10")
            e(f"    s_add_u32 s{sI}, s{sI}, s{sX}")
            e(f"    v_add_u32 v1, s{sX}, v1")
            e(f"    s_lshr_b32 s{sInc}, s{sInc}, 8")
            e(f"    s_cbranch_scc0 L_lgend")
            e(f"    s_bitcmp0_b32 s{sInc}, {8 * (3 - bq)}")
            e(f"    s_cbranch_scc1 L_lquad")
            if bq > 1:
                e(f"    s_lshr_b32 s{sX}, s{sInc}, {8 * (4 - bq)}")
                e(f"    s_cbranch_scc1 L_lquad")
        else:
            e(f"    v_add_u32 v1, 0x400, v1")
            e(f"    s_addk_i32 s{sI}, 0x400")
            e(f"    s_cmpk_eq_u32 s{sI}, 0x1000")
            e(f"    s_cbranch_scc1 L_lgend")
            e(f"    s_cmpk_lg_u32 s{sI}, {bq * 0x400:#x}")
            e(f"    s_cbranch_scc1 L_lquad")
        e(f"    ds_read_b32 v3, v2")
        if qe:
            e(f"    s_sub_u32 s{sX}, s{sQi}, 2")
            e(f"    s_cmp_ge_u32 s{sX}, {qe - 2}")
        else:
            e(f"    s_cmp_lt_u32 s{sQi}, 2")
        e(f"    s_cbranch_scc1 L_lquad")
        e(f"    s_waitcnt vmcnt({16 + 4 * bq})")
        if jit & 4:
            assert stamp
            e("    s_sleep 30")
        e("    s_barrier")
        if jit & 8:
            assert stamp
            e("    s_sleep 30")
        e(f"    s_branch L_lquad")
        e("L_lgend:")
        if qe:
            e(f"    s_cmp_lt_u32 s{sQi}, {qe}")
            e(f"    s_cbranch_scc1 L_lgend2")
            e(f"    s_waitcnt vmcnt(32)")
            e("    s_barrier")
            e("L_lgend2:")
        e(f"    s_add_u32 s{sQi}, s{sQi}, 1")
        e(f"    s_and_b32 s{sT}, s{sQi}, 3")
        e(f"    s_cselect_b32 s{sT}, 8, 40")
        e(f"    s_lshl_b32 s{sT}, s{sT}, 10")
        e(f"    s_waitcnt lgkmcnt(0)")
        e(f"    v_readfirstlane_b32 s{sTh}, v3")
        for u in range(4):
            e(f"    s_add_u32 s{sU[u]}, s{sU[u]}, s{sT}")
            e(f"    s_add_u32 s{mU[u]}, s{mU[u]}, s{sT}")
            e(f"    s_sub_u32 s37, s{mU[u]}, {RB}")
            e(f"    s_cselect_b32 s{mU[u]}, s{mU[u]}, s37")
    e(f"    s_cmp_eq_u32 s{sQi}, 48")
    e(f"    s_cbranch_scc1 L_lswitch")
    e(f"    s_cmp_lt_u32 s{sQi}, {96 - nend}")
    e(f"    s_cbranch_scc1 L_lgrp")
    if lastc:
        pos = ((7 * 192 + 152) % R)
        assert pos + 40 <= R
        e(f"    s_cmp_lg_u32 s{sQi}, 95")
        e(f"    s_cbranch_scc1 L_ldone")
        for u in range(1, 4):
            e(f"    s_add_u32 s{sU[u]}, s{sU[0]}, {u*1024}")
            e(f"    s_add_u32 s{mU[u]}, s{mU[0]}, {u*1024}")
        e(f"    s_mov_b32 s54, 0x01041c04")
        e(f"    s_mov_b32 s{sTh}, {enc(32):#x}")
        e(f"    s_branch L_lgrp")
        e("L_ldone:")
    else:
        e(f"    v_mov_b32 v1, v4")
        if nend > 1:
            e("L_lend:                                        ; last groups: fixed wide window, straight-line issue")
            for pos in range(16):
                u, i = pos & 3, pos >> 2
                e(f"    s_mov_b32 m0, s{mU[u]}")
                e(f"    s_waitcnt vmcnt({Wend-1})")
                if pos == max(Wend - 17, 0): e("    s_barrier")
                e(f"    buffer_load_dwordx4 v1, s[{sD}:{sD+3}], s{sU[u]} offen offset:{i*1024} nt lds")
                if pos == 10:
                    e(f"    s_add_u32 s{sQi}, s{sQi}, 1")
                    e(f"    s_and_b32 s{sT}, s{sQi}, 3")
                    e(f"    s_cselect_b32 s{sT}, 8, 40")
                    e(f"    s_lshl_b32 s{sT}, s{sT}, 10")
                if pos >= 12:
                    e(f"    s_add_u32 s{sU[u]}, s{sU[u]}, s{sT}")
                    e(f"    s_add_u32 s{mU[u]}, s{mU[u]}, s{sT}")
                    e(f"    s_sub_u32 s37, s{mU[u]}, {RB}")
                    e(f"    s_cselect_b32 s{mU[u]}, s{mU[u]}, s37")
            e(f"    s_cmp_lt_u32 s{sQi}, 95")
            e(f"    s_cbranch_scc1 L_lend")
        order = [(0, i) for i in range(4)] + [(1, i) for i in range(4)] + [(u, i) for i in range(4) for u in (2, 3)]
        for pos, (u, i) in enumerate(order):
            e(f"    s_mov_b32 m0, s{mU[u]}")
            e(f"    s_waitcnt vmcnt({16 + lb if pos == lb else 31})")
            if pos == lb: e("    s_barrier")
            e(f"    buffer_load_dwordx4 v1, s[{sD}:{sD+3}], s{sU[u]} offen offset:{i*1024} nt lds")
    for n in (16, 12, 8):
        e(f"    s_waitcnt vmcnt({n})")
        e("    s_barrier")
    e("    s_waitcnt vmcnt(0)")
    ts(5)
    e("    s_barrier")
    if stamp:
        for k in (3, 4):
            e(f"    s_mov_b32 s{sTS+2*k}, s{sTS}")
        if clk:
            e("    s_memtime s[58:59]")
            e("    s_waitcnt lgkmcnt(0)")
            e(f"    s_sub_u32 s{sTS+6}, s58, s56")
        e("    s_branch L_fin")
    else:
        e("    s_endpgm")
    e("L_lswitch:                                     ; K issued: switch to V")
    e(f"    s_add_u32 s{sD}, s8, s32")
    e(f"    s_addc_u32 s{sD+1}, s9, 0")
    for u in range(4):
        e(f"    s_sub_u32 s{sU[u]}, s{sU[u]}, s{sD+2}")
    e(f"    s_branch L_lgrp")
    align()
    e("; ---------------- balancer")
    e("L_ctl:")
    e("    s_load_dwordx2 s[16:17], s[0:1], 48        ; d_debug")
    e("    s_mov_b32 s18, 256")
    e("    s_mov_b32 s19, 0x20000")
    e("    v_and_b32 v0, 63, v0")
    e("    v_lshlrev_b32 v1, 12, v0")
    e("    s_getreg_b32 s20, hwreg(HW_REG_HW_ID, 8, 7)")
    e("    v_lshlrev_b32 v9, 4, v0")
    e("    s_lshr_b32 s21, s20, 5")
    e("    s_and_b32 s20, s20, 15")
    e("    s_lshl_b32 s21, s21, 4")
    e("    s_or_b32 s20, s20, s21")
    e(f"    v_mov_b32 v4, {COFF}")
    e("    s_mov_b32 s21, 4")
    e("    v_mov_b32 v5, 0")
    e("    v_mov_b32 v8, 0")
    e("    s_mul_i32 s22, s2, 3072")
    e("    s_mov_b32 s26, 3072")
    e("    s_mov_b32 s27, 0x20000")
    e(f"    s_mov_b32 m0, {QOFF}")
    e("    s_waitcnt lgkmcnt(0)")
    e("    s_add_u32 s24, s4, s22")
    e("    s_addc_u32 s25, s5, 0")
    e("    s_barrier")
    for k in range(3):
        e(f"    buffer_load_dwordx4 v9, s[24:27], 0 offen offset:{k*1024} nt lds   ; q -> LDS")
    e("    s_barrier")
    e("    s_barrier")
    e("    s_waitcnt vmcnt(0)")
    def cbody(vr):
        e("    s_barrier")
        if jit & 16:
            assert stamp
            e("    s_sleep 50")
        e("    s_waitcnt vmcnt(2)")
        e(f"    s_sub_u32 s22, s21, {2 + rng}")
        e("    v_mov_b32 v3, s21")
        e(f"    v_subrev_u32 v6, s22, v{vr}")
        e(f"    v_cmp_ne_u32 s[30:31], 0, v{vr}")
        e(f"    v_cmp_gt_u32 vcc, {2*rng}, v6")
        e(f"    v_subrev_u32 v6, {rng}, v6")
        e("    buffer_store_byte v3, v1, s[16:19], s20 offen")
        e("    s_and_b64 vcc, vcc, s[30:31]")
        e(f"    buffer_load_ubyte v{vr}, v0, s[16:19], 0 offen sc1")
        e("    v_cndmask_b32 v6, 0, v6, vcc")
        for ctrl in ("row_shr:1", "row_shr:2", "row_shr:4", "row_shr:8"):
            e("    s_nop 1")
            e(f"    v_add_u32_dpp v6, v6, v6 {ctrl} row_mask:0xf bank_mask:0xf bound_ctrl:1")
        e("    s_add_u32 s21, s21, 1")
        e("    v_readlane_b32 s22, v6, 15")
        e("    v_readlane_b32 s23, v6, 31")
        e("    v_readlane_b32 s28, v6, 47")
        e("    v_readlane_b32 s29, v6, 63")
        e("    s_add_i32 s22, s22, s23")
        e("    s_add_i32 s28, s28, s29")
        e("    s_add_i32 s22, s22, s28")
        e(f"    s_add_i32 s22, s22, {cb}")
        e(f"    s_ashr_i32 s22, s22, {sh}")
        e(f"    s_add_i32 s22, s22, {W}")
        e(f"    s_max_i32 s22, s22, {wmin}")
        e(f"    s_min_i32 s22, s22, {wmax}")
        e(f"    s_cmp_lt_u32 s21, 8")
        e(f"    s_cselect_b32 s22, {W}, s22")
        for item in ramp.split(","):
            if item:
                q0, add = item.split(":")
                e(f"    s_cmp_ge_u32 s21, {q0}")
                e(f"    s_cselect_b32 s23, {add}, 0")
                e(f"    s_add_i32 s22, s22, s23")
        e(f"    s_min_i32 s22, s22, 32")
        e(f"    s_and_b32 s23, s22, 15")
        e(f"    s_lshr_b32 s22, s22, 4")
        e(f"    s_lshl_b32 s22, s22, 22")
        e(f"    s_or_b32 s22, s22, s23")
        e("    v_mov_b32 v7, s22")
        e("    ds_write_b32 v4, v7")
    e("L_cgrp:")
    cbody(5)
    cbody(8)
    e(f"    s_cmp_lt_u32 s21, {cend}")
    e("    s_cbranch_scc1 L_cgrp")
    e("    s_endpgm")
    sC, sP, sP0, sEo, sEn, sFl, sSeq, sB, sT2 = 33, 34, 37, 38, 39, 40, 42, 45, 46
    sSC, sL2E, sMSK, sER, sEs, sBi = 47, 48, 49, 51, 52, 53
    vA = [4, 5, 6, 7]; vB = [8, 9, 10, 11]; vE0, vE, vL16, vQo, vSR = 12, 13, 14, 15, 3
    vP, vQD, ACC, TT, EE = 16, 20, 28, 44, 60
    NV = 64
    align()
    e("; ---------------- consumers")
    e("L_cons:")
    if not wide:
        e("    s_load_dwordx4 s[12:15], s[0:1], 32        ; f out")
    if stamp:
        e(f"    s_load_dwordx2 s[60:61], s[0:1], 56")
    e(f"    s_cmp_eq_u32 s{sW}, 256")
    e(f"    s_cbranch_scc1 L_ctl")
    e(f"    s_lshr_b32 s{sC}, s{sW}, 6")
    e(f"    s_sub_u32 s{sC}, s{sC}, 1")
    e("    v_and_b32 v0, 63, v0")
    e(f"    v_lshlrev_b32 v{vL16}, 4, v0")
    e("    v_and_b32 v1, 15, v0")
    e("    v_lshrrev_b32 v2, 4, v0                    ; g")
    e(f"    v_mul_u32_u24 v{vQo}, 0x180, v1")
    e(f"    s_lshl_b32 s{sT}, s{sC}, 7")
    e(f"    v_lshl_add_u32 v{vQo}, v2, 3, v{vQo}")
    e(f"    v_add_u32 v{vQo}, s{sT}, v{vQo}")
    e(f"    v_mul_u32_u24 v{vE0}, 0x410, v1")
    e(f"    v_lshl_add_u32 v{vE0}, v2, 3, v{vE0}")
    e(f"    v_lshrrev_b32 v{vA[1]}, 2, v0")
    e(f"    v_mul_u32_u24 v{vA[1]}, 3, v{vA[1]}")
    e(f"    v_add_u32 v{vA[1]}, s{sC}, v{vA[1]}")
    e(f"    v_bfe_u32 v{vA[2]}, v{vA[1]}, 1, 2")
    e(f"    v_lshlrev_b32 v{vA[2]}, 5, v{vA[2]}")
    e(f"    v_lshl_add_u32 v{vA[2]}, v{vA[1]}, 7, v{vA[2]}")
    e(f"    v_and_b32 v{vA[3]}, 3, v0")
    e(f"    v_lshl_add_u32 v{vA[0]}, v{vA[3]}, 3, v{vA[2]}")
    for t in range(1, 4):
        e(f"    v_xor_b32 v{vA[t]}, {32*t}, v{vA[0]}")
    e(f"    v_add_u32 v{vSR}, {SOFF}, v{vL16}")
    e(f"    v_lshlrev_b32 v2, 2, v2")
    e(f"    v_sub_u32 v2, v1, v2")
    e(f"    v_mov_b32 v{TT}, 0x3f80")
    e(f"    v_mov_b32 v{TT+1}, 0x3f800000")
    e(f"    v_mov_b32 v{vP}, 0")
    e(f"    v_mov_b32 v{vP+1}, 0")
    for k in range(4):
        e(f"    v_cmp_eq_u32 vcc, {k}, v2")
        e(f"    s_nop 1")
        e(f"    v_cndmask_b32 v{vP+(k>>1)}, v{vP+(k>>1)}, v{TT+(k&1)}, vcc")
    e(f"    s_mov_b32 s{sP}, 0")
    e(f"    s_mov_b32 s{sP0}, 0")
    e(f"    s_mov_b32 s{sEo}, {EOFF}")
    e(f"    s_mov_b32 s{sEn}, {EOFF+ES}")
    for r in range(16):
        e(f"    v_mov_b32 v{ACC+r}, 0")
    e(f"    s_mov_b32 s{sE+2}, 65536")
    e(f"    s_mov_b32 s{sE+3}, 0x20000")
    e(f"    s_mul_i32 s{sT}, s{sC}, 1040")
    e(f"    s_add_u32 m0, s{sT}, s{sEo}")
    e(f"    s_lshl_b32 s{sB}, s{sC}, 12")
    e("    s_mul_i32 s32, s2, 3072")
    e(f"    s_mov_b32 s{sO+2}, 3072" if nodrop else f"    s_mov_b32 s{sO+2}, 0")
    e(f"    s_mov_b32 s{sO+3}, 0x20000")
    e("    s_waitcnt lgkmcnt(0)")
    ts(1)
    e(f"    s_mov_b32 s{sE}, s10")
    e(f"    s_mov_b32 s{sE+1}, s11")
    e(f"    s_add_u32 s{sO}, s14, s32")
    e(f"    s_addc_u32 s{sO+1}, s15, 0")
    if e0late:
        e("    s_barrier")
    e("L_e0:                                          ; period-0 projection rows c, c+3, ...")
    e(f"    buffer_load_dwordx4 v{vL16}, s[{sE}:{sE+3}], s{sB} offen lds")
    e(f"    s_addk_i32 m0, {3*1040}")
    e(f"    s_addk_i32 s{sB}, {3*4096}")
    e(f"    s_cmp_lt_u32 s{sB}, s{sE+2}")
    e(f"    s_cbranch_scc1 L_e0")
    e("L_period:")
    e(f"    s_mov_b32 s{sSeq}, {SEQ & 0xffffffff:#x}")
    e(f"    s_mov_b32 s{sSeq+1}, {SEQ >> 32:#x}")
    e(f"    s_mov_b32 s{sFl}, {FL:#x}")
    e(f"    s_mov_b32 s{sER}, s{sC}")
    e(f"    s_mov_b32 s{sBi}, -1")
    e(f"    s_add_u32 s{sEs}, s{sP}, 1")
    e(f"    s_and_b32 s{sEs}, s{sEs}, 3")
    e(f"    s_cbranch_scc1 L_nosw")
    e(f"    s_mov_b32 s{sE}, s12")
    e(f"    s_mov_b32 s{sE+1}, s13")
    e("L_nosw:")
    e(f"    s_lshl_b32 s{sEs}, s{sEs}, 10")
    e(f"    s_cmp_eq_u32 s{sP}, 7")
    e(f"    s_cselect_b32 s{sER}, 16, s{sER}")
    e(f"    s_cselect_b32 s{sFl}, {FL_LAST:#x}, s{sFl}")
    if e0late:
        assert first[:3] == [1, 0, 1]
        e(f"    s_cmp_eq_u32 s{sP}, 0")
        e(f"    s_cselect_b32 s{sFl}, {FL & ~4:#x}, s{sFl}")
    e("    s_barrier")
    if stamp:
        e(f"    s_cmp_lg_u32 s{sP}, 0")
        e(f"    s_cbranch_scc1 L_nots2")
        ts(2)
        e("L_nots2:")
    e(f"    s_cmp_eq_u32 s{sP}, 3")
    e(f"    s_cbranch_scc1 L_qread")
    if defer:
        e(f"    s_cmp_eq_u32 s{sP}, 4")
        e(f"    s_cbranch_scc1 L_epi")
    e(f"    s_cmp_eq_u32 s{sP}, {5 if defer else 4}")
    e(f"    s_cbranch_scc1 L_softmax")
    e("L_q0done:")
    e("    s_waitcnt vmcnt(0)")
    e("L_block:")
    e(f"    s_and_b32 s{sB}, s{sSeq}, 15")
    e(f"    s_lshr_b64 s[{sSeq}:{sSeq+1}], s[{sSeq}:{sSeq+1}], 4")
    e(f"    s_lshl_b32 s{sT2}, s{sB}, 6")
    e(f"    s_add_u32 s{sT2}, s{sT2}, s{sEo}")
    e(f"    s_mul_i32 s{sB}, s{sB}, 12288")
    e(f"    v_add_u32 v{vE}, s{sT2}, v{vE0}")
    e(f"    s_add_u32 s{sB}, s{sB}, s{sP0}")
    for _ in range(2):
        e(f"    s_sub_u32 s{sT}, s{sB}, {RB}")
        e(f"    s_cselect_b32 s{sB}, s{sB}, s{sT}")
    for t in range(4):
        e(f"    v_add_u32 v{vB[t]}, s{sB}, v{vA[t]}")
    e(f"    s_bitcmp0_b32 s{sFl}, 0")
    e(f"    s_cbranch_scc1 L_nobarc")
    e("    s_barrier")
    e("L_nobarc:")
    if jit & 1:
        assert stamp
        e(f"    s_add_u32 s{sT}, s{sBi}, s{sC}")
        e(f"    s_add_u32 s{sT}, s{sT}, s2")
        e(f"    s_and_b32 s{sT}, s{sT}, 3")
        e(f"    s_cbranch_scc1 L_nojit")
        e(f"    s_sleep 40")
        e("L_nojit:")
    e(f"    ds_read_b64 v[{EE}:{EE+1}], v{vE}")
    e(f"    ds_read_b64 v[{EE+2}:{EE+3}], v{vE} offset:32")
    for t in range(4):
        e(f"    ds_read_b64_tr_b16 v[{TT+4*t}:{TT+4*t+1}], v{vB[t]}")
        e(f"    ds_read_b64_tr_b16 v[{TT+4*t+2}:{TT+4*t+3}], v{vB[t]} offset:6144")
    e(f"    s_add_u32 s{sBi}, s{sBi}, 1")
    e(f"    s_cmp_lg_u32 s{sER}, s{sBi}")
    e(f"    s_cbranch_scc1 L_noe")
    e(f"    s_mul_i32 s{sT}, s{sER}, 1040")
    e(f"    s_add_u32 m0, s{sT}, s{sEn}")
    e(f"    s_lshl_b32 s{sT}, s{sER}, 12")
    e(f"    s_add_u32 s{sT}, s{sT}, s{sEs}")
    e(f"    s_add_u32 s{sER}, s{sER}, 3")
    e(f"    buffer_load_dwordx4 v{vL16}, s[{sE}:{sE+3}], s{sT} offen lds")
    e("L_noe:")
    if jit & 2:
        assert stamp
        e(f"    s_sleep 10")
    e(f"    s_lshr_b32 s{sFl}, s{sFl}, 1")
    e(f"    s_cmp_lg_u32 s{sFl}, 1")
    for t in range(4):
        e(f"    s_waitcnt lgkmcnt({6-2*t})")
        e(f"    v_mfma_f32_16x16x32_bf16 v[{ACC+4*t}:{ACC+4*t+3}], v[{EE}:{EE+3}], v[{TT+4*t}:{TT+4*t+3}], v[{ACC+4*t}:{ACC+4*t+3}]")
    e(f"    s_cbranch_scc1 L_block")
    e(f"    s_add_u32 s{sP}, s{sP}, 1")
    e(f"    s_and_b32 s{sT}, s{sP}, {7 if defer else 3}")
    e(f"    s_cbranch_scc1 L_nextp")
    A0 = TT; D0 = ACC; R0 = TT + 8
    e("L_epi:")
    if stamp:
        e(f"    s_cmp_lg_u32 s{sP}, 4")
        e(f"    s_cbranch_scc1 L_nots3")
        ts(3)
        e("L_nots3:")
    for k in range(8):
        e(f"    v_cvt_pk_bf16_f32 v{A0+k}, v{ACC+2*k}, v{ACC+2*k+1}")
    if nodrop:
        e(f"    s_cmp_lg_u32 s{sP}, 8")
        for t in range(4):
            e(f"    v_mfma_f32_16x16x16_bf16 v[{D0+4*t}:{D0+4*t+3}], v[{A0+2*t}:{A0+2*t+1}], v[{vP}:{vP+1}], 0")
        e("    s_nop 4")
        for t in range(4):
            e(f"    v_cvt_pk_bf16_f32 v{R0+2*t}, v{D0+4*t}, v{D0+4*t+1}")
            e(f"    v_cvt_pk_bf16_f32 v{R0+2*t+1}, v{D0+4*t+2}, v{D0+4*t+3}")
        e(f"    s_cbranch_scc1 L_kpass")
        for t in range(4):
            e(f"    buffer_store_dwordx2 v[{R0+2*t}:{R0+2*t+1}], v{vQo}, s[{sO}:{sO+3}], 0 offen offset:{32*t}")
        e("    s_branch L_fin" if stamp else "    s_endpgm")
        e("L_kpass:")
        e("    s_nop 0")
    else:
        e(f"    s_cmp_eq_u32 s{sP}, 8")
        for t in range(4):
            e(f"    v_mfma_f32_16x16x16_bf16 v[{D0+4*t}:{D0+4*t+3}], v[{A0+2*t}:{A0+2*t+1}], v[{vP}:{vP+1}], 0")
        e("    s_nop 4")
        for t in range(4):
            e(f"    v_cvt_pk_bf16_f32 v{R0+2*t}, v{D0+4*t}, v{D0+4*t+1}")
            e(f"    v_cvt_pk_bf16_f32 v{R0+2*t+1}, v{D0+4*t+2}, v{D0+4*t+3}")
            e(f"    buffer_store_dwordx2 v[{R0+2*t}:{R0+2*t+1}], v{vQo}, s[{sO}:{sO+3}], 0 offen offset:{32*t}")
        e(f"    s_cbranch_scc1 L_fin")
    S0 = EE
    e(f"    v_mfma_f32_16x16x32_bf16 v[{S0}:{S0+3}], v[{R0}:{R0+3}], v[{vQD}:{vQD+3}], 0")
    e(f"    v_mfma_f32_16x16x32_bf16 v[{S0}:{S0+3}], v[{R0+4}:{R0+7}], v[{vQD+4}:{vQD+7}], v[{S0}:{S0+3}]")
    e(f"    s_lshl_b32 s{sT}, s{sC}, 10")
    e(f"    v_add_u32 v{vE}, s{sT}, v{vSR}")
    for r in range(16):
        e(f"    v_mov_b32 v{ACC+r}, 0")
    e(f"    ds_write_b128 v{vE}, v[{S0}:{S0+3}]")
    if not nodrop:
        e(f"    s_mov_b32 s{sO+2}, 3072")
    e("    s_waitcnt lgkmcnt(0)")
    if defer and nodrop:
        e(f"    s_branch L_q0done")
    elif defer:
        e("    s_waitcnt vmcnt(4)")
        e(f"    s_branch L_block")
    e("L_nextp:")
    e(f"    s_add_u32 s{sP0}, s{sP0}, {196608 - RB}")
    e(f"    s_sub_u32 s{sT}, s{sP0}, {RB}")
    e(f"    s_cselect_b32 s{sP0}, s{sP0}, s{sT}")
    e(f"    s_mov_b32 s{sT}, s{sEo}")
    e(f"    s_mov_b32 s{sEo}, s{sEn}")
    e(f"    s_mov_b32 s{sEn}, s{sT}")
    e(f"    s_branch L_period")
    e("L_qread:")
    e(f"    v_and_b32 v1, 7, v0")
    e(f"    v_mul_u32_u24 v1, 0x180, v1")
    e(f"    v_lshrrev_b32 v2, 4, v0")
    e(f"    v_lshl_add_u32 v1, v2, 3, v1")
    e(f"    s_lshl_b32 s{sT}, s{sC}, 7")
    e(f"    s_add_u32 s{sT}, s{sT}, {QOFF}")
    e(f"    v_add_u32 v1, s{sT}, v1")
    for t in range(4):
        e(f"    ds_read_b64 v[{vQD+2*t}:{vQD+2*t+1}], v1 offset:{32*t}")
    e("    s_waitcnt lgkmcnt(0)")
    e(f"    s_branch L_q0done")
    e("L_softmax:")
    X = TT; Y = TT + 12
    for m in range(3):
        e(f"    ds_read_b128 v[{X+4*m}:{X+4*m+3}], v{vSR} offset:{m*1024}")
    e(f"    s_mov_b32 s{sSC}, 0x3d93cd3a                ; 192^-0.5")
    e(f"    s_mov_b32 s{sL2E}, 0x3fb8aa3b                ; log2(e)")
    e(f"    s_mov_b32 s{sMSK}, 0xffff0000")
    for m in range(1, 3):
        e(f"    s_waitcnt lgkmcnt({2-m})")
        for k in range(4):
            e(f"    v_add_f32 v{X+k}, v{X+k}, v{X+4*m+k}")
    def round4():
        e(f"    v_cvt_pk_bf16_f32 v{Y}, v{X}, v{X+1}")
        e(f"    v_cvt_pk_bf16_f32 v{Y+1}, v{X+2}, v{X+3}")
        e(f"    v_lshlrev_b32 v{X}, 16, v{Y}")
        e(f"    v_and_b32 v{X+1}, s{sMSK}, v{Y}")
        e(f"    v_lshlrev_b32 v{X+2}, 16, v{Y+1}")
        e(f"    v_and_b32 v{X+3}, s{sMSK}, v{Y+1}")
    round4()
    for i in range(4):
        e(f"    v_mul_f32 v{X+i}, s{sSC}, v{X+i}")
    round4()
    def allreduce(op):
        for sw in ("v_permlane16_swap_b32", "v_permlane32_swap_b32"):
            e(f"    v_mov_b32 v{Y+1}, v{Y}")
            e(f"    s_nop 1")
            e(f"    {sw} v{Y}, v{Y+1}")
            e(f"    s_nop 1")
            e(f"    {op} v{Y}, v{Y}, v{Y+1}")
    e(f"    v_max3_f32 v{Y}, v{X}, v{X+1}, v{X+2}")
    e(f"    v_max_f32 v{Y}, v{Y}, v{X+3}")
    allreduce("v_max_f32")
    for i in range(4):
        e(f"    v_sub_f32 v{X+i}, v{X+i}, v{Y}")
    for i in range(4):
        e(f"    v_mul_f32 v{X+i}, s{sL2E}, v{X+i}")
    for i in range(4):
        e(f"    v_exp_f32 v{X+i}, v{X+i}")
    e("    s_nop 0")
    e(f"    v_add_f32 v{Y}, v{X}, v{X+1}")
    e(f"    v_add_f32 v{Y+2}, v{X+2}, v{X+3}")
    e(f"    v_add_f32 v{Y}, v{Y}, v{Y+2}")
    allreduce("v_add_f32")
    e(f"    v_rcp_f32 v{Y}, v{Y}")
    e("    s_nop 0")
    for i in range(4):
        e(f"    v_mul_f32 v{X+i}, v{X+i}, v{Y}")
    e(f"    v_cvt_pk_bf16_f32 v{vP}, v{X}, v{X+1}")
    e(f"    v_cvt_pk_bf16_f32 v{vP+1}, v{X+2}, v{X+3}")
    ts(4)
    e(f"    s_branch L_q0done")
    e("L_fin:")
    if stamp:
        e(f"    s_cmp_eq_u32 s{sW}, 0")
        e(f"    s_cbranch_scc1 L_fin2")
        e(f"    s_mov_b32 s{sTS+10}, s{sTS}")
        e("L_fin2:")
        e("    s_waitcnt vmcnt(0)")
        ts(6)
        e(f"    s_getreg_b32 s{sTS+14}, hwreg(HW_REG_XCC_ID)")
        e(f"    s_getreg_b32 s{sT}, hwreg(HW_REG_HW_ID)")
        e(f"    s_and_b32 s{sTS+14}, s{sTS+14}, 15")
        e(f"    s_lshl_b32 s{sT}, s{sT}, 4")
        e(f"    s_or_b32 s{sTS+14}, s{sTS+14}, s{sT}")
        e(f"    s_mov_b32 s62, 0x100000")
        e(f"    s_mov_b32 s63, 0x20000")
        e("    s_waitcnt lgkmcnt(0)")
        for k in range(8):
            e(f"    v_mov_b32 v{ACC+k}, s{sTS+2*k}")
        e(f"    s_mul_i32 s{sT}, s2, 160")
        e(f"    s_lshr_b32 s{sW}, s{sW}, 1")
        e(f"    s_add_u32 s{sT}, s{sT}, s{sW}")
        e(f"    v_mov_b32 v2, s{sT}")
        e(f"    buffer_store_dwordx4 v[{ACC}:{ACC+3}], v2, s[60:63], 0 offen")
        e(f"    buffer_store_dwordx4 v[{ACC+4}:{ACC+7}], v2, s[60:63], 0 offen offset:16")
    e("L_end:")
    e("    s_endpgm")
    e('.section .rodata,"a"')
    e(".p2align 6")
    e(f".amdhsa_kernel {NAME}_kernel")
    e(f"  .amdhsa_next_free_vgpr {NV}")
    e(f"  .amdhsa_next_free_sgpr {80 if stamp else 56}")
    e(f"  .amdhsa_accum_offset {(NV+3)//4*4}")
    e("  .amdhsa_group_segment_fixed_size 0")
    e("  .amdhsa_kernarg_size 64")
    e("  .amdhsa_user_sgpr_count 2")
    e("  .amdhsa_user_sgpr_kernarg_segment_ptr 1")
    e("  .amdhsa_system_sgpr_workgroup_id_x 1")
    e("  .amdhsa_float_denorm_mode_32 3")
    e(".end_amdhsa_kernel")
    return "\n".join(L) + "\n"

if __name__ == "__main__":
    ap = argparse.ArgumentParser()
    ap.add_argument("-o", default="-")
    for k, d in dict(W=19, R=120, wmin=16, wmax=24, sh=3, cb=32, al=6, rng=8, bq=1, lastc=0, defer=1, cend=92, Wbeg=19, qe=0, unr=0, bp=4, pre=0, dn=0, clk=0, gran=1, lal=-1, keep=0, oob=0, lb=15, e0late=0, tight=0, cpf=1, jit=0, nend=1, Wend=32, nodrop=1).items():
        ap.add_argument("--" + k, type=int, default=d)
    ap.add_argument("--ramp", default="89:13")
    ap.add_argument("--uo", default="0123")
    ap.add_argument("--stamp", action="store_true")
    a = vars(ap.parse_args()); o = a.pop("o")
    (sys.stdout if o == "-" else open(o, "w")).write(gen(**a))
```
